```python
import torch

def _softmax(x, axis=-1):
    return torch.softmax(x, dim=axis)
def _gelu(x):
    return torch.nn.functional.gelu(x, approximate="tanh")
def _silu(x):
    return torch.nn.functional.silu(x)
def _sigmoid(x):
    return torch.sigmoid(x)
def _layernorm(x, axis=-1, eps=1e-5):
    m = x.mean(dim=axis, keepdim=True)
    v = x.var(dim=axis, keepdim=True, unbiased=False)
    return (x - m) / torch.sqrt(v + eps)
def _scatter_add(tgt, idx, src, axis=0):
    return tgt.clone().index_add_(axis, idx, src)
def _segment_sum(src, seg, n):
    out = torch.zeros((n,) + src.shape[1:], dtype=src.dtype)
    return out.index_add_(0, seg, src)
def _pad(x, pw):
    flat = tuple(v for pair in reversed(pw) for v in pair)
    return torch.nn.functional.pad(x, flat)

kernel_name = 'interleave_layers__sliding_local_dilated__dense_activation_relu__prompt'

def setup_inputs():

    _w = (lambda a: (lambda t: t.to(torch.bfloat16) if t.is_floating_point() else t)(torch.as_tensor(a)))
    def _A_setup():
        B, S, D = 1, 2048, 512
        return {
            "x": _w((lambda *s: torch.randn(*s, dtype=torch.bfloat16) * 0.05)(B, S, D)),
            "wqkv": _w((lambda *s: torch.randn(*s, dtype=torch.bfloat16) * 0.05)(D, 3 * D)),
            "wo": _w((lambda *s: torch.randn(*s, dtype=torch.bfloat16) * 0.05)(D, D)),
        }
    _A_in = _A_setup()

    def _B_setup():
        B, S, D, Dff = 1, 2048, 512, 1376
        return {
            "x": _w((lambda *s: torch.randn(*s, dtype=torch.bfloat16) * 0.05)(B, S, D)),
            "w1": _w((lambda *s: torch.randn(*s, dtype=torch.bfloat16) * 0.05)(D, Dff)),
            "w2": _w((lambda *s: torch.randn(*s, dtype=torch.bfloat16) * 0.05)(Dff, D)),
        }
    _B_in = _B_setup()

    return {
        "A_x": _A_in["x"],
        "A_wqkv": _A_in["wqkv"],
        "A_wo": _A_in["wo"],
        "B_x": _B_in["x"],
        "B_w1": _B_in["w1"],
        "B_w2": _B_in["w2"],
    }

def reference(A_x, A_wqkv, A_wo, B_x, B_w1, B_w2):
    def _A_ref(x, wqkv, wo):
        B, S, D = x.shape
        H = 32; Dh = D // H
        W, dil = 8, 2
        qkv = (lambda x, *d: x.permute(*d))((x @ wqkv).reshape(B, S, 3, H, Dh), 2, 0, 3, 1, 4)
        q, k, v = qkv[0], qkv[1], qkv[2]
        scale = Dh ** -0.5
        pos = torch.arange(S)
        off = torch.arange(W) * dil
        idx = pos[:, None] - off[None, :]
        mask = idx >= 0
        idx_c = torch.where(mask, idx, 0).reshape(-1)
        kg = k[:, :, idx_c, :].reshape(B, H, S, W, Dh)
        vg = v[:, :, idx_c, :].reshape(B, H, S, W, Dh)
        logits = torch.einsum("bhsd,bhswd->bhsw", q, kg) * scale
        logits = torch.where(mask[None, None, :, :], logits, -1e9)
        attn = _softmax(logits, axis=-1)
        o = torch.einsum("bhsw,bhswd->bhsd", attn, vg)
        return (lambda x, *d: x.permute(*d))(o, 0, 2, 1, 3).reshape(B, S, D) @ wo

    def _B_ref(x, w1, w2):
        h = torch.einsum("bsd,df->bsf", x, w1)
        zero = torch.zeros_like(h)
        h = torch.maximum(h, zero)
        return torch.einsum("bsf,fd->bsd", h, w2)

    x = A_x
    x = x + _A_ref(_layernorm(x, axis=-1), A_wqkv, A_wo)
    x = x + _B_ref(_layernorm(x, axis=-1), B_w1, B_w2)
    x = x + _A_ref(_layernorm(x, axis=-1), A_wqkv, A_wo)
    x = x + _B_ref(_layernorm(x, axis=-1), B_w1, B_w2)
    return x
```

```python
import re

def _regs(tok):
    tok = tok.strip()
    tok = tok.lstrip('-')
    if tok.startswith('abs(') or tok.startswith('|'):
        tok = tok.replace('abs(', '').replace(')', '').replace('|', '')
    m = re.fullmatch(r'([vas])\[(\d+):(\d+)\]', tok)
    if m:
        return [(m.group(1), i) for i in range(int(m.group(2)), int(m.group(3)) + 1)]
    m = re.fullmatch(r'([vas])(\d+)', tok)
    if m:
        return [(m.group(1), int(m.group(2)))]
    if tok in ('vcc', 'vcc_lo', 'vcc_hi'):
        return [('s', 'vcc')]
    if tok in ('exec', 'exec_lo', 'exec_hi'):
        return [('s', 'exec')]
    if tok == 'm0':
        return [('s', 'm0')]
    return []

TRANS = ('v_exp_f32', 'v_log_f32', 'v_rcp_f32', 'v_rsq_f32', 'v_sqrt_f32', 'v_sin_f32', 'v_cos_f32')

class Ins:
    __slots__ = ('text', 'op', 'kind', 'rd', 'wr', 'a', 'b', 'c', 'passes', 'states', 'dpp')
    def __init__(self, text):
        self.text = text
        t = text.split(';')[0].strip()
        self.rd = set(); self.wr = set(); self.a = set(); self.b = set(); self.c = []
        self.passes = 0; self.states = 1; self.dpp = False
        if not t or t.endswith(':') or t.startswith('.'):
            self.op = ''; self.kind = 'none'; self.states = 0
            return
        parts = t.split(None, 1)
        op = parts[0]
        op = re.sub(r'_(e32|e64)$', '', op)
        self.op = op
        rest = parts[1] if len(parts) > 1 else ''
        ops = [o.strip() for o in rest.split(',')]
        mods = ''
        clean = []
        for i, o in enumerate(ops):
            if ' ' in o:
                f, r = o.split(None, 1)
                clean.append(f); mods = r + ',' + ','.join(ops[i + 1:])
                break
            clean.append(o)
        ops = clean
        R = [_regs(o) for o in ops]
        if op.startswith('v_mfma'):
            self.kind = 'mfma'
            self.wr = set(R[0]); self.a = set(R[1]); self.b = set(R[2]); self.c = R[3]
            self.rd = self.a | self.b | set(self.c)
            self.passes = 8 if '32x32x16' in op else 4
        elif op.startswith('v_'):
            self.kind = 'valu'
            if op.endswith('_dpp'):
                self.dpp = True
            if op.startswith('v_cmp'):
                self.wr = set(R[0]); self.rd = set(sum(R[1:], []))
            elif op.startswith('v_permlane'):
                self.wr = set(R[0] + R[1]); self.rd = set(R[0] + R[1])
            elif op in ('v_add_co_u32', 'v_addc_co_u32', 'v_sub_co_u32'):
                self.wr = set(R[0] + R[1]); self.rd = set(sum(R[2:], []))
            else:
                self.wr = set(R[0]); self.rd = set(sum(R[1:], []))
                if op.startswith('v_fmac') or op.startswith('v_dot2c') or self.dpp or op.startswith('v_writelane'):
                    self.rd |= set(R[0])
        elif op.startswith('ds_'):
            self.kind = 'ds'
            if op.startswith('ds_read') or op.startswith('ds_bpermute'):
                self.wr = set(R[0]); self.rd = set(sum(R[1:], []))
            else:
                self.rd = set(sum(R, []))
        elif op.startswith('buffer_') or op.startswith('global_'):
            self.kind = 'vmem'
            if 'lds' in mods.replace(',', ' ').split() or 'load_lds' in op:
                self.rd = set(sum(R, [])) | {('s', 'm0')}
                self.kind = 'vmem'; self.c = ['dma']
            elif '_load' in op:
                self.wr = set(R[0]); self.rd = set(sum(R[1:], []))
            else:
                self.rd = set(sum(R, []))
                if op.startswith('buffer_store') and ('x4' in op or 'x3' in op): self.a = set(R[0])
                if op.startswith('global_store') and ('x4' in op or 'x3' in op): self.a = set(R[1])
        elif op.startswith('s_'):
            self.kind = 'salu'
            if op == 's_nop':
                self.states = int(ops[0], 0) + 1
            elif op.startswith('s_cmp') or op.startswith('s_cbranch') or op in ('s_waitcnt', 's_barrier', 's_branch', 's_endpgm', 's_sleep', 's_setprio'):
                self.rd = set(sum(R, []))
            else:
                self.wr = set(R[0]) if R else set(); self.rd = set(sum(R[1:], []))
                if 'saveexec' in op: self.wr |= {('s', 'exec')}
        else:
            raise ValueError('unknown instr: ' + text)

def need_states(p, c):
    n = 0
    vw = {r for r in p.wr if r[0] in 'va'}
    sw = {r for r in p.wr if r[0] == 's'}
    if p.kind == 'valu':
        if c.kind == 'mfma' and vw & c.rd: n = max(n, 2)
        if c.kind == 'valu':
            if c.op.startswith('v_permlane') and vw & c.rd: n = max(n, 2)
            if c.dpp and vw & c.rd: n = max(n, 2)
            if c.op.startswith('v_read') and vw & c.rd: n = max(n, 1)
            if p.op in TRANS and c.op not in TRANS and vw & c.rd: n = max(n, 1)
            if sw & c.rd: n = max(n, 4 if (c.op.startswith('v_readlane') or c.op.startswith('v_writelane')) else 2)
            if ('s', 'vcc') in sw and c.op.startswith('v_cndmask') : n = max(n, 2)
        if c.kind == 'vmem' and sw & c.rd: n = max(n, 5)
        if c.kind == 'salu' and sw & c.rd: n = max(n, 1)
    if p.kind == 'mfma':
        big = 12 if p.passes == 8 else 8
        if c.kind == 'mfma':
            if p.wr & (c.a | c.b): n = max(n, big)
            cs = set(c.c)
            if p.wr & cs:
                if not (cs == p.wr and c.passes == p.passes): n = max(n, big - 2)
            elif p.wr & c.wr: n = max(n, big - 2)
        elif c.kind in ('valu', 'ds', 'vmem'):
            if p.wr & (c.rd | c.wr): n = max(n, big)
            if c.kind == 'valu' and set(p.c) & c.wr: n = max(n, 7 if p.passes == 8 else 3)
    if p.kind == 'salu' and ('s', 'm0') in p.wr and c.kind == 'vmem' and c.c == ['dma']: n = max(n, 1)
    if p.kind == 'vmem' and p.a and (p.a & c.wr): n = max(n, 2)
    return n

def pad_hazards(lines, verbose=False):
    out = []
    added = 0
    for text in lines:
        c = Ins(text)
        if c.kind != 'none':
            dist = 0; need = 0
            for p in reversed(out):
                if dist >= 20: break
                if p.kind != 'none':
                    need = max(need, need_states(p, c) - dist)
                dist += p.states
            if need > 0:
                out.append(Ins('s_nop %d' % (need - 1))); added += need
                if verbose: print('pad %d before %s' % (need, text))
        out.append(c)
    return [i.text for i in out], added

class Asm:
    def __init__(self):
        self.L = []
        self.vm_n = 0; self.vm_done = 0
        self.lg_n = 0; self.lg_done = 0
    def __call__(self, s):
        for line in s.split('\n'):
            line = line.strip()
            if line: self.L.append(line)
    def vm(self, s):
        self(s); self.vm_n += 1; return self.vm_n
    def lg(self, s):
        self(s); self.lg_n += 1; return self.lg_n
    def wait(self, vm=None, lg=None):
        parts = []
        if vm is not None and vm > self.vm_done:
            n = min(self.vm_n - vm, 63); parts.append('vmcnt(%d)' % n); self.vm_done = self.vm_n - n
        if lg is not None and lg > self.lg_done:
            n = min(self.lg_n - lg, 15); parts.append('lgkmcnt(%d)' % n); self.lg_done = self.lg_n - n
        if parts: self('s_waitcnt ' + ' '.join(parts))
    def wait_all_vm(self): self.wait(vm=self.vm_n)
    def wait_all_lg(self): self.wait(lg=self.lg_n)

def vr(b, n=1, f='v'):
    return '%s%d' % (f, b) if n == 1 else '%s[%d:%d]' % (f, b, b + n - 1)
```

```python
import sys, os
sys.path.insert(0, os.path.dirname(os.path.abspath(__file__)))
from asmlib import *

NAME = "interleave_layers__sliding_local_dilated__dense_activation_relu__prompt"
OPT = dict(prof=0, stop=99, force_slow=0)
for a in sys.argv[2:]:
    k, v = a.split('='); OPT[k] = int(v)

WS_E, WS_F0, WS_FT = 0, 0x1000, 0x4000
WS_SB = 0x10000
WS_HX = 0x110000
WS_XB = 0x200000
WS_HB = 0x400000
HB_SZ = 176 * 1024
WS_WQ, WS_WO, WS_W1, WS_W2 = 0xA00000, 0xB80000, 0xC00000, 0xD80000
WS_PROF = 0xF00000
WS_SZ = 0x1000000
OOB = 0x08000000
L_A = 0
L_RED = 81920
L_PARK = 98304
L_CS = 114688
L_ST = 139264
L_SM = L_ST + 1024
L_SR = L_ST + 1536
LDS_BYTES = 143360

KDESC = """.section .rodata,"a"
.p2align 6
.amdhsa_kernel %s
  .amdhsa_next_free_vgpr %d
  .amdhsa_next_free_sgpr 102
  .amdhsa_accum_offset %d
  .amdhsa_group_segment_fixed_size 0
  .amdhsa_kernarg_size 72
  .amdhsa_user_sgpr_count 2
  .amdhsa_user_sgpr_kernarg_segment_ptr 1
  .amdhsa_system_sgpr_workgroup_id_x 1
  .amdhsa_float_denorm_mode_32 3
.end_amdhsa_kernel
.text"""

def gen_pre():
    A = Asm()
    A("s_cmp_ge_u32 s2, 302\ns_cbranch_scc1 P_end")
    A("s_load_dwordx4 s[4:7], s[0:1], 8")
    A("s_load_dwordx4 s[8:11], s[0:1], 32")
    A("s_load_dwordx2 s[16:17], s[0:1], 64")
    A("v_lshrrev_b32 v1, 6, v0\nv_and_b32 v0, 63, v0")
    A("v_readfirstlane_b32 s3, v1")
    A("s_lshl_b32 s20, s2, 2\ns_add_u32 s20, s20, s3")
    A("s_lshl_b32 s21, s3, 12")
    A("s_mov_b32 s18, %d\ns_mov_b32 s19, 0x20000\ns_mov_b32 s15, 0x20000" % WS_SZ)
    A("s_waitcnt lgkmcnt(0)")
    A("s_mov_b32 s12, s4\ns_mov_b32 s13, s5\ns_mov_b32 s14, %d" % (512 * 3072))
    A("s_mov_b32 s22, 3072\ns_mov_b32 s23, %d\ns_mov_b32 s24, 16384\ns_mov_b32 s25, s20\ns_mov_b32 s30, 96" % WS_WQ)
    A("s_cmp_lt_u32 s20, 384\ns_cbranch_scc1 P_typeA")
    A("s_mov_b32 s12, s8\ns_mov_b32 s13, s9\ns_mov_b32 s14, %d" % (512 * 2752))
    A("s_mov_b32 s22, 2752\ns_mov_b32 s23, %d\ns_sub_u32 s25, s20, 384\ns_mov_b32 s30, 86" % WS_W1)
    A("s_cmp_lt_u32 s20, 736\ns_cbranch_scc1 P_typeA")
    A("s_mov_b32 s12, s6\ns_mov_b32 s13, s7\ns_mov_b32 s14, %d" % (512 * 1024))
    A("s_mov_b32 s22, 1024\ns_mov_b32 s23, %d\ns_sub_u32 s25, s20, 736" % WS_WO)
    A("s_cmp_lt_u32 s20, 864\ns_cbranch_scc1 P_typeB")
    A("s_mov_b32 s12, s10\ns_mov_b32 s13, s11\ns_mov_b32 s14, %d" % (1376 * 1024))
    A("s_mov_b32 s23, %d\ns_sub_u32 s25, s20, 864\ns_mov_b32 s24, %d" % (WS_W2, 43 * 1024))
    A("P_typeB:")
    A("s_lshr_b32 s26, s25, 3\ns_and_b32 s27, s25, 7\ns_mov_b32 s31, 1\ns_mov_b32 s30, 1000")
    A("v_lshrrev_b32 v2, 5, v0\nv_lshlrev_b32 v2, 10, v2")
    A("v_bfe_u32 v3, v0, 2, 2\nv_lshl_add_u32 v2, v3, 7, v2")
    A("v_bfe_u32 v3, v0, 4, 1\nv_lshl_add_u32 v2, v3, 5, v2")
    A("v_and_b32 v3, 1, v0\nv_lshl_add_u32 v2, v3, 4, v2")
    A("v_bfe_u32 v3, v0, 1, 1\nv_lshl_add_u32 v2, v3, 3, v2")
    A("s_branch P_go")
    A("P_typeA:")
    A("s_and_b32 s26, s25, 15\ns_lshr_b32 s27, s25, 4\ns_mov_b32 s31, 0")
    A("v_lshrrev_b32 v2, 4, v0\nv_lshlrev_b32 v2, 10, v2")
    A("v_bfe_u32 v3, v0, 2, 2\nv_lshl_add_u32 v2, v3, 7, v2")
    A("v_and_b32 v3, 3, v0\nv_lshl_add_u32 v2, v3, 3, v2")
    A("P_go:")
    A("v_add_u32 v2, s21, v2")
    A("s_mul_i32 s28, s26, s22\ns_lshl_b32 s28, s28, 5\ns_lshl_b32 s29, s27, 7\ns_add_u32 s28, s28, s29")
    A("v_lshrrev_b32 v4, 3, v0\nv_mul_lo_u32 v4, v4, s22\nv_and_b32 v3, 7, v0\nv_lshl_add_u32 v4, v3, 4, v4")
    A("v_add_u32 v4, s28, v4")
    A("s_lshl_b32 s29, s22, 3")
    for n in range(4):
        A("s_add_u32 s3, s21, %d\ns_mov_b32 m0, s3" % (n * 1024))
        A("buffer_load_dwordx4 v4, s[12:15], 0 offen lds")
        if n < 3: A("v_add_u32 v4, s29, v4")
    A("s_mul_i32 s28, s27, s24\ns_lshl_b32 s28, s28, 2\ns_add_u32 s28, s28, s23\ns_lshl_b32 s29, s26, 10\ns_add_u32 s28, s28, s29")
    A("v_lshlrev_b32 v5, 4, v0")
    A("s_lshl_b32 s27, s27, 2")
    A("s_waitcnt vmcnt(0)")
    A("s_cmp_eq_u32 s31, 0\ns_cbranch_scc1 P_rdA")
    for f in range(4):
        for hh in range(2):
            A("ds_read_b64_tr_b16 v[%d:%d], v2 offset:%d" % (8 + f * 4 + hh * 2, 9 + f * 4 + hh * 2, (f >> 1) * 64 + (f & 1) * 2048 + hh * 512))
    A("s_branch P_st")
    A("P_rdA:")
    for f in range(4):
        for hh in range(2):
            A("ds_read_b64_tr_b16 v[%d:%d], v2 offset:%d" % (8 + f * 4 + hh * 2, 9 + f * 4 + hh * 2, f * 32 + hh * 512))
    A("P_st:")
    A("s_waitcnt lgkmcnt(0)")
    for f in range(4):
        A("s_add_u32 s3, s27, %d\ns_cmp_ge_u32 s3, s30\ns_cbranch_scc1 P_end" % f)
        A("buffer_store_dwordx4 v[%d:%d], v5, s[16:19], s28 offen" % (8 + f * 4, 11 + f * 4))
        A("s_add_u32 s28, s28, s24")
    A("P_end:")
    A("s_endpgm")
    return A.L

sT, sJ, sW, sFAST = 4, 5, 6, 7
rX, rOUT, rWS, rW1 = 's[8:11]', 's[12:15]', 's[16:19]', 's[20:23]'
sNH, sKH = 24, 25
sWQ = [26, 27, 28]; sWO = 29; sW1 = [30, 31, 32]; sW2 = 33
sXB, sHB, sSBp, sSBc, sSBh, sFT, sFTm, sNAT = 34, 35, 36, 37, 38, 39, 40, 41
sHXp, sHXc, sHst, sLIM, sSPIN, sXst = 42, 43, 44, 45, 46, 47
sPAR, sSEL0, sSEL1 = 's[48:49]', 's[50:51]', 's[52:53]'
sTMP = [54, 55, 56]
sA, sB = 57, 58
sXCC = 59
sE, sTAG = 60, 62
sST0 = 64
vL16, vL16h, vKeep, vSend, vXst, vFlag, vSBp, vSBc, vStA, vStB = range(1, 11)
vRes = 16
vAcc = 32
vAf = 88
def Yslot(n): return vr(192 + 4 * n, 4, 'a') if n < 16 else vr(128 + 4 * (n - 16), 4, 'v')
def Xslot(n): return vr(4 * n, 4, 'a')
MF16 = 'v_mfma_f32_16x16x32_bf16'
MF32 = 'v_mfma_f32_32x32x16_bf16'
CEXP = 0.25 * 1.4426950408889634

import struct
def fbits(x): return '0x%08x' % struct.unpack('<I', struct.pack('<f', x))[0]

class Main:
    def __init__(self):
        self.A = Asm(); self.soff = {}; self.nst = 0; self.lbl = 0
        self.q = []
        self.tok = {}
    def stamp(self):
        if OPT['prof'] and self.nst < 18:
            self.A("s_memtime s[%d:%d]" % (sST0 + 2 * self.nst, sST0 + 2 * self.nst + 1)); self.nst += 1
    def label(self, p):
        self.lbl += 1; return "L_%s_%d" % (p, self.lbl)
    def so(self, sbase, off, slot):
        hi = off & ~4095
        if hi == 0: return sbase, off
        if self.soff.get(slot) != (sbase, hi):
            self.A("s_add_u32 s%d, s%d, %d" % (sTMP[slot], sbase, hi)); self.soff[slot] = (sbase, hi)
        return sTMP[slot], off & 4095
    def wload(self, key):
        kind, n = key[0], key[1]
        if kind == 'WQ': dst, srd, sb, off, sl = Xslot(n), rWS, sWQ[n % 3], (n // 3) * 1024, n % 3
        elif kind == 'WO1': dst, srd, sb, off, sl = Yslot(27 + n), rWS, sWO, n * 1024, 0
        elif kind == 'WO2': dst, srd, sb, off, sl = Xslot(3 * n), rWS, sWO, n * 1024, 0
        elif kind == 'W11': dst, srd, sb, off, sl = Yslot(n), rW1, sW1[n % 3], (n // 3) * 1024, n % 3
        elif kind == 'W12': dst, srd, sb, off, sl = self.w12(n), rW1, sW1[n % 3], (n // 3) * 1024, n % 3
        elif kind == 'W2': dst, srd, sb, off, sl = Yslot(n), rWS, sW2, n * 1024, 0
        s, imm = self.so(sb, off, sl)
        self.tok[key] = self.A.vm("buffer_load_dwordx4 %s, v%d, %s, s%d offen offset:%d" % (dst, vL16, srd, s, imm))
    def w12(self, n): return Xslot(3 * (n >> 1) + 1 + (n & 1)) if n < 32 else Xslot(3 * (n - 32))
    def push(self, keys): self.q += list(keys)
    def bg(self, n=1):
        for _ in range(n):
            if self.q: self.wload(self.q.pop(0))
    def need(self, key):
        while key not in self.tok:
            assert self.q, key
            self.wload(self.q.pop(0))
        self.A.wait(vm=self.tok[key])
    def stores(self, texts):
        A = self.A
        l1, l2 = self.label('slow'), self.label('join')
        A("s_cmp_eq_u32 s%d, 0\ns_cbranch_scc1 %s" % (sFAST, l1))
        for t in texts: tok = A.vm(t)
        A("%s:" % l2)
        self.cold.append("%s:" % l1)
        for t in texts: self.cold.append(t + " sc1")
        self.cold.append("s_branch %s" % l2)
        return tok
    def publish(self, tok, phase):
        A = self.A
        A("v_mov_b32 v11, %d\nv_mov_b32 v12, 0" % phase)
        A.wait(vm=tok)
        A("s_mov_b64 exec, 1")
        self.stores(["buffer_store_dword v11, v12, %s, s%d offen" % (rWS, sFTm)])
        A("s_mov_b64 exec, -1")
    def poll(self, phase):
        A = self.A
        l, ok = self.label('poll'), self.label('pok')
        A("%s:" % l)
        A.vm("buffer_load_dword v11, v%d, %s, s%d offen sc1" % (vFlag, rWS, sFT))
        A("s_sub_u32 s%d, s%d, 1\ns_cbranch_scc1 L_end" % (sSPIN, sSPIN))
        A.wait_all_vm()
        A("v_cmp_gt_u32 vcc, %d, v11\ns_cbranch_vccnz %s" % (phase, l))
    def dma(self, srd, voff, sbase, off, ldsbase_s, ldsoff, flags='sc1', sep=False):
        A = self.A
        s, imm = self.so(sbase, off, 0)
        m = (ldsbase_s, ldsoff - imm)
        if self.soff.get('m0') != m:
            A("s_add_u32 m0, s%d, %d" % (ldsbase_s, (ldsoff - imm) & 0xffffffff)); self.soff['m0'] = m
        return A.vm("buffer_load_dwordx4 v%d, %s, s%d offen offset:%d %s lds" % (voff, srd, s, imm, flags))
    def lds(self, off):
        return ("v%d" % vL16, off) if off < 65536 else ("v%d" % vL16h, off - 65536)
    def stats_make(self):
        A = self.A; r = vRes
        A("v_pk_add_f32 v[12:13], v[%d:%d], v[%d:%d]" % (r, r + 1, r + 2, r + 3))
        A("v_pk_mul_f32 v[14:15], v[%d:%d], v[%d:%d]" % (r, r + 1, r, r + 1))
        for i in range(1, 8):
            if i > 1: A("v_pk_add_f32 v[12:13], v[12:13], v[%d:%d]" % (r + 2 * i, r + 2 * i + 1))
            A("v_pk_fma_f32 v[14:15], v[%d:%d], v[%d:%d], v[14:15]" % (r + 2 * i, r + 2 * i + 1, r + 2 * i, r + 2 * i + 1))
        A("v_add_f32 v12, v12, v13\nv_add_f32 v14, v14, v15")
        A("v_permlane32_swap_b32 v12, v14")
        A("v_add_f32 v14, v12, v14")
    def stats_store(self, use):
        s, imm = self.so(sSBp, use * 32 * 8192, 1)
        return self.A.vm("buffer_store_dword v14, v%d, %s, s%d offen offset:%d sc1" % (vSBp, rWS, s, imm))
    def stats_load(self, sbase, use, dst):
        A = self.A
        A("s_add_u32 s%d, s%d, %d" % (sA, sbase, use * 32 * 8192))
        A.vm("buffer_load_dwordx4 %s, v%d, %s, s%d offen sc1" % (vr(dst, 4), vSBc, rWS, sA))
        return A.vm("buffer_load_dwordx4 %s, v%d, %s, s%d offen offset:16 sc1" % (vr(dst + 4, 4), vSBc, rWS, sA))
    def sentinel_check(self, tok, regs, reload_lines):
        A = self.A
        A.wait(vm=tok)
        chk = []
        chk.append("v_max3_u32 v11, v%d, v%d, v%d" % tuple(regs[:3]))
        rest = regs[3:]
        while len(rest) >= 2:
            chk.append("v_max3_u32 v11, v11, v%d, v%d" % (rest[0], rest[1])); rest = rest[2:]
        if rest: chk.append("v_max_u32 v11, v11, v%d" % rest[0])
        chk.append("v_cmp_eq_u32 vcc, -1, v11")
        l1, l2 = self.label('retry'), self.label('got')
        for c in chk: A(c)
        A("s_cbranch_vccnz %s\n%s:" % (l1, l2))
        self.cold.append("%s:" % l1)
        self.cold += reload_lines
        self.cold.append("s_sub_u32 s%d, s%d, 1\ns_cbranch_scc1 L_end\ns_waitcnt vmcnt(0)" % (sSPIN, sSPIN))
        self.cold += chk
        self.cold.append("s_cbranch_vccnz %s\ns_branch %s" % (l1, l2))
    def stats_finish(self, r, tile_off_s=None, tile=None):
        F = []
        F.append("v_pk_add_f32 v[%d:%d], v[%d:%d], v[%d:%d]" % (r, r + 1, r, r + 1, r + 2, r + 3))
        F.append("v_pk_add_f32 v[%d:%d], v[%d:%d], v[%d:%d]" % (r + 4, r + 5, r + 4, r + 5, r + 6, r + 7))
        F.append("v_pk_add_f32 v[%d:%d], v[%d:%d], v[%d:%d]" % (r, r + 1, r, r + 1, r + 4, r + 5))
        F.append("v_permlane32_swap_b32 v%d, v%d" % (r, r + 1))
        F.append("v_add_f32 v%d, v%d, v%d" % (r, r, r + 1))
        F.append("v_mov_b32 v%d, v%d" % (r + 1, r))
        F.append("v_permlane16_swap_b32 v%d, v%d" % (r, r + 1))
        F.append("v_add_f32 v%d, v%d, v%d" % (r, r, r + 1))
        F.append("v_mov_b32 v%d, v%d" % (r + 1, r))
        F.append("v_permlane32_swap_b32 v%d, v%d" % (r, r + 1))
        F.append("v_mul_f32 v%d, %s, v%d" % (r, fbits(-1.0 / 512), r))
        F.append("v_mul_f32 v%d, %s, v%d" % (r + 1, fbits(1.0 / 512), r + 1))
        F.append("v_fma_f32 v%d, -v%d, v%d, v%d" % (r + 1, r, r, r + 1))
        F.append("v_max_f32 v%d, 0, v%d" % (r + 1, r + 1))
        F.append("v_add_f32 v%d, %s, v%d" % (r + 1, fbits(1e-5), r + 1))
        F.append("v_rsq_f32 v%d, v%d" % (r + 1, r + 1))
        if tile is None:
            F.append("v_lshl_add_u32 v%d, s%d, 7, v%d" % (r + 2, sW, vStA)); o = 0
        else:
            F.append("v_add_u32 v%d, %d, v%d" % (r + 2, tile * 128, vStA)); o = 0
        F.append("v_lshrrev_b32 v%d, 1, v%d" % (r + 3, r + 2))
        F.append("v_add_u32 v%d, %d, v%d" % (r + 3, L_SM - L_ST // 2, r + 3))
        F.append(('lg', "ds_write_b64 v%d, v[%d:%d]" % (r + 2, r, r + 1)))
        F.append(('lg', "ds_write2_b32 v%d, v%d, v%d offset0:0 offset1:128" % (r + 3, r, r + 1)))
        return F
    def emit(self, f):
        if callable(f): return f()
        if isinstance(f, tuple): return self.A.lg(f[1]) if f[0] == 'lg' else self.A.vm(f[1])
        self.A(f)
    def gemm1(self, wkey, wreg, acc, swap, cs, groups, gtok, hook):
        A = self.A; NB = 5
        rtok = {}
        def rd(f):
            ks, tt = f >> 2, f & 3
            if tt == 0 and ks in groups:
                A.wait(vm=gtok(ks)); A("s_barrier")
            v, o = self.lds(L_A + tt * 16384 + ks * 1024)
            rtok[f] = A.lg("ds_read_b128 %s, %s offset:%d" % (vr(vAf + 4 * (f % NB), 4), v, o))
        for f in range(4): rd(f)
        for ks in range(16):
            i = 0
            for tt in range(4):
                f = 4 * ks + tt
                for ct in range(3):
                    if tt == 0 and wkey: self.need((wkey, 3 * ks + ct))
                    if ct == 0: A.wait(lg=rtok[f])
                    a, b = wreg(3 * ks + ct), vr(vAf + 4 * (f % NB), 4)
                    if swap(ct): a, b = b, a
                    d = vr(acc(ct, tt), 4)
                    A("%s %s, %s, %s, %s" % (MF16, d, a, b, d if ks else '0'))
                    if ct == 0 and f + 4 < 64: rd(f + 4)
                    hook(ks, i); i += 1
                if cs is not None and tt < 3:
                    a, b = wreg(3 * ks + tt), vr(cs[1], 4)
                    if swap(tt): a, b = b, a
                    d = vr(cs[0] + 4 * tt, 4)
                    A("%s %s, %s, %s, %s" % (MF16, d, a, b, d if ks else '0'))
    def gemm2(self, ns, wkey, wreg, init_keep, hook):
        A = self.A
        nc = (ns + 3) // 4
        dtok = {}
        def dma1(c, u):
            sb = sB if (ns == 43 and c == nc - 1) else sA
            dtok[c] = self.dma(rWS, vL16, sb, c * 16384 + u * 1024, sHst, (c & 3) * 16384 + u * 1024)
        A("s_lshl_b32 s%d, s%d, 12" % (sHst, sW))
        A("s_add_u32 s%d, s%d, s%d" % (sA, sHB, sHst))
        A("s_cmp_eq_u32 s%d, 3\ns_cselect_b32 s%d, %d, s%d" % (sW, sB, OOB, sA))
        self.soff.pop(0, None); self.soff.pop('m0', None)
        for c in range(2):
            for u in range(4): dma1(c, u)
        if init_keep:
            for u in range(4):
                itok = A.lg("ds_read_b128 %s, v13 offset:%d" % (vr(vAcc + 4 * u, 4), u * 1024))
        rtok = {}
        def rd(i, h):
            c = i >> 2
            reg = 64 + (c & 1) * 32 + (i & 3) * 8 + h * 4
            rtok[(i, h)] = A.lg("ds_read_b128 %s, v%d offset:%d" % (vr(reg, 4), vSend if h else vKeep, (i & 15) * 4096))
        A.wait(vm=dtok[0]); A("s_barrier")
        self.stamp()
        for i in range(4):
            rd(i, 1); rd(i, 0)
            if nc > 2: dma1(2, i)
        for c in range(nc):
            steps = list(range(4 * c, min(4 * c + 4, ns)))
            nxt = list(range(4 * c + 4, min(4 * c + 8, ns)))
            pend = [(i, h) for i in nxt for h in (1, 0)]
            pd = list(range(4)) if c + 3 < nc else []
            n = 0
            for i in steps:
                for h in (1, 0):
                    if n == 2 and nxt:
                        A.wait(vm=dtok[c + 1], lg=A.lg_n); A("s_barrier")
                    if h == 1 and wkey: self.need((wkey, i))
                    A.wait(lg=rtok[(i, h)])
                    reg = 64 + (c & 1) * 32 + (i & 3) * 8 + h * 4
                    d = vr(vAcc + 16 * h, 16)
                    cin = d if (i or (h == 0 and init_keep)) else '0'
                    A("%s %s, %s, %s, %s" % (MF32, d, wreg(i), vr(reg, 4), cin))
                    if n >= 2:
                        for _ in range(2):
                            if pend: rd(*pend.pop(0))
                        if pd: dma1(c + 3, pd.pop(0))
                    hook(i, h); n += 1
            assert not pend and not pd
        A("v_lshl_add_u32 v12, s%d, 12, v%d" % (sW, vL16h))
        A("v_xor_b32 v13, 0x1000, v12")
        for u in range(4): A.lg("ds_write_b128 v12, %s offset:%d" % (vr(vAcc + 16 + 4 * u, 4), L_RED - 65536 + u * 1024))
        A.wait_all_lg(); A("s_barrier")
        for u in range(4): rtok[u] = A.lg("ds_read_b128 %s, v13 offset:%d" % (vr(64 + 4 * u, 4), L_RED - 65536 + u * 1024))
        return rtok
    def xpack(self):
        for i in range(8): self.A("v_cvt_pk_bf16_f32 v%d, v%d, v%d" % (80 + i, vRes + 2 * i, vRes + 2 * i + 1))
    def park(self):
        A = self.A
        A("v_lshl_add_u32 v13, s%d, 12, v%d" % (sW, vL16h))
        for u in range(4): A.lg("ds_write_b128 v13, %s offset:%d" % (vr(vRes + 4 * u, 4), L_PARK - 65536 + u * 1024))
    def attention(self, layer, halo_ready):
        A = self.A
        Q = lambda t: vAcc + 4 * t; K = lambda t: (vAcc + 16 + 4 * t) if t >= 0 else vAcc + 48; V = lambda t: (vAcc + 32 + 4 * t) if t >= 0 else vAcc + 52
        Qb = lambda t: 100 + 2 * t; Kb = lambda t: 110 + 2 * t; Vb = lambda t: 120 + 2 * t
        SA = lambda t: 16 + 2 * (t if t >= 0 else 4)
        tb = lambda t: t if t >= 0 else 4
        csQ, csK, csV, ones, M = 236, 240, 244, 248, 252
        P2 = lambda r: "v[%d:%d]" % (r, r + 1)
        LO = "op_sel:[0,0,0] op_sel_hi:[1,0,1]"
        tk = {}
        for t in (0, 1, 2, 3, -1): tk['A', t] = A.lg("ds_read_b64 %s, v%d offset:%d" % (P2(SA(t)), vStA, tb(t) * 128))
        def rdB(t, r):
            A.lg("ds_read_b128 %s, v%d offset:%d" % (vr(r, 4), vStB, tb(t) * 64))
            tk['B', t] = A.lg("ds_read_b128 %s, v%d offset:%d" % (vr(r + 4, 4), vStB, tb(t) * 64 + 512))
        def fixQ(t):
            A.wait(lg=tk['A', t])
            for h in (0, 2): A("v_pk_fma_f32 %s, %s, %s, %s %s" % (P2(Q(t) + h), P2(csQ + h), P2(SA(t)), P2(Q(t) + h), LO))
            for h in (0, 2): A("v_cvt_pk_bf16_f32 v%d, v%d, v%d" % (Qb(t) + h // 2, Q(t) + h, Q(t) + h + 1))
        def fixK(t):
            A.wait(lg=tk['A', t])
            for h in (0, 2): A("v_pk_fma_f32 %s, %s, %s, %s %s" % (P2(K(t) + h), P2(csK + h), P2(SA(t)), P2(K(t) + h), LO))
            for h in (0, 2): A("v_pk_mul_f32 %s, %s, %s op_sel:[0,1] op_sel_hi:[1,1]" % (P2(K(t) + h), P2(K(t) + h), P2(SA(t))))
            for h in (0, 2): A("v_cvt_pk_bf16_f32 v%d, v%d, v%d" % (Kb(t) + h // 2, K(t) + h, K(t) + h + 1))
        def fixV(t, r):
            A.wait(lg=tk['B', t])
            for h in (0, 2): A("v_pk_fma_f32 %s, %s, %s, %s %s" % (P2(V(t) + h), P2(r + h), P2(csV), P2(V(t) + h), LO))
            for h in (0, 2): A("v_pk_mul_f32 %s, %s, %s" % (P2(V(t) + h), P2(V(t) + h), P2(r + 4 + h)))
            for h in (0, 2): A("v_cvt_pk_bf16_f32 v%d, v%d, v%d" % (Vb(t) + h // 2, V(t) + h, V(t) + h + 1))
        def smm(t):
            A("v_mfma_f32_16x16x16_bf16 %s, %s, %s, 0" % (vr(Q(t), 4), P2(Kb(t)), P2(Qb(t))))
            A("v_mfma_f32_16x16x16_bf16 %s, %s, %s, 0" % (vr(K(t), 4), P2(Kb(t - 1)), P2(Qb(t))))
        def soft(t):
            c, p, P = Q(t), K(t), V(t)
            F = []
            F.append("v_cndmask_b32 v%d, v%d, v%d, %s" % (c, c, c + 1, sPAR))
            F.append("v_cndmask_b32 v%d, v%d, v%d, %s" % (c + 1, c + 2, c + 3, sPAR))
            F.append("v_cndmask_b32 v%d, v%d, v%d, %s" % (p, p, p + 1, sPAR))
            F.append("v_cndmask_b32 v%d, v%d, v%d, %s" % (p + 1, p + 2, p + 3, sPAR))
            if t == 0:
                F.append("v_min_f32 v%d, s%d, v%d" % (p, sLIM, p)); F.append("v_min_f32 v%d, s%d, v%d" % (p + 1, sLIM, p + 1))
            F.append("v_cndmask_b32 v%d, v%d, v%d, %s" % (c, p, c, sSEL0))
            F.append("v_cndmask_b32 v%d, v%d, v%d, %s" % (c + 1, p + 1, c + 1, sSEL1))
            F.append("v_mul_f32 v%d, %s, v%d" % (p + 3, fbits(CEXP), SA(t) + 1))
            F.append("v_max_f32 v%d, v%d, v%d" % (c + 2, c, c + 1))
            F.append("v_mov_b32 v%d, v%d" % (c + 3, c + 2))
            F.append("v_permlane32_swap_b32 v%d, v%d" % (c + 2, c + 3))
            F.append("v_max_f32 v%d, v%d, v%d" % (c + 2, c + 2, c + 3))
            F.append("v_mov_b32 v%d, v%d" % (c + 3, c + 2))
            F.append("v_permlane16_swap_b32 v%d, v%d" % (c + 2, c + 3))
            F.append("v_max_f32 v%d, v%d, v%d" % (c + 2, c + 2, c + 3))
            F.append("v_sub_f32 v%d, v%d, v%d" % (c, c, c + 2))
            F.append("v_sub_f32 v%d, v%d, v%d" % (c + 1, c + 1, c + 2))
            F.append("v_mul_f32 v%d, v%d, v%d" % (c, c, p + 3))
            F.append("v_mul_f32 v%d, v%d, v%d" % (c + 1, c + 1, p + 3))
            F.append("v_exp_f32 v%d, v%d" % (c, c))
            F.append("v_exp_f32 v%d, v%d" % (c + 1, c + 1))
            F.append("v_cvt_pk_bf16_f32 v%d, v%d, v%d" % (c, c, c))
            F.append("v_cvt_pk_bf16_f32 v%d, v%d, v%d" % (c + 1, c + 1, c + 1))
            F.append("v_and_b32 v%d, v%d, v%d" % (P, M, c))
            F.append("v_and_b32 v%d, v%d, v%d" % (P + 1, M + 1, c + 1))
            F.append("v_and_b32 v%d, v%d, v%d" % (P + 2, M + 2, c))
            F.append("v_and_b32 v%d, v%d, v%d" % (P + 3, M + 3, c + 1))
            return F
        def pv(t):
            A("%s %s, %s, %s, 0" % (MF16, vr(K(t), 4), vr(ones, 4), vr(V(t), 4)))
            A("%s %s, %s, %s, 0" % (MF16, vr(Q(t), 4), vr(Vb(t - 1), 4), vr(V(t), 4)))
        def fin(t):
            A("v_rcp_f32 v%d, v%d" % (K(t), K(t)))
            for h in (0, 2): A("v_pk_mul_f32 %s, %s, %s op_sel:[0,0] op_sel_hi:[1,0]" % (P2(Q(t) + h), P2(Q(t) + h), P2(K(t))))
            for h in (0, 2): A("v_cvt_pk_bf16_f32 v%d, v%d, v%d" % (Qb(t) + h // 2, Q(t) + h, Q(t) + h + 1))
        def ost(p):
            r = Qb(2 * p)
            A("v_permlane16_swap_b32 v%d, v%d" % (r, r + 2)); A("v_permlane16_swap_b32 v%d, v%d" % (r + 1, r + 3))
            return self.stores(["buffer_store_dwordx4 %s, v%d, %s, s%d offen offset:%d" % (vr(r, 4), vL16, rWS, sA, p * 1024)])
        rdB(0, 88)
        for t in range(4):
            fixQ(t); fixK(t); self.bg(1)
            fixV(t, 88)
            rdB(t + 1 if t < 3 else -1, 88) if t < 3 else None
            if t >= 1: smm(t)
            self.bg(1)
        halo_ready()
        F = []
        s1, s2, s3 = soft(1), soft(2), soft(3)
        for a, b, c in zip(s1, s2, s3): F += [a, b, c]
        ht = {}
        def hrd(ks): ht[ks] = A.lg("ds_read_b128 %s, v%d offset:%d" % (vr(88 + 4 * (ks % 3), 4), vL16h, ks * 1024))
        hrd(0); hrd(1)
        for ks in range(16):
            A.wait(lg=ht[ks])
            b = vr(88 + 4 * (ks % 3), 4)
            A("%s %s, %s, %s, %s" % (MF16, vr(K(-1), 4), Xslot(3 * ks + 1), b, vr(K(-1), 4) if ks else '0'))
            if ks + 2 < 16: hrd(ks + 2)
            for _ in range(2):
                if F: A(F.pop(0))
            A("%s %s, %s, %s, %s" % (MF16, vr(V(-1), 4), b, Xslot(3 * ks + 2), vr(V(-1), 4) if ks else '0'))
            for _ in range(3):
                if F: A(F.pop(0))
            if layer == 2: self.push([('W12', 2 * ks), ('W12', 2 * ks + 1)])
            if ks % 2: self.bg(1)
        while F: A(F.pop(0))
        rdB(-1, 88)
        for t in (1, 2, 3): pv(t)
        fixK(-1); smm(0); self.bg(1)
        fixV(-1, 88)
        A("s_lshl_b32 s%d, s%d, 2\ns_add_u32 s%d, s%d, s%d\ns_lshl_b32 s%d, s%d, 11\ns_add_u32 s%d, s%d, s%d" % (sA, sJ, sA, sA, sW, sA, sA, sA, sA, sHB))
        fin(2); fin(3); ost(1)
        for f in soft(0): A(f)
        pv(0); fin(1); fin(0)
        return ost(0)
    def masks(self):
        return ["v_mov_b32 v11, 0xffff", "v_mov_b32 v12, 0xffff0000", "v_cndmask_b32 v11, v11, v12, %s" % sPAR,
                "v_cndmask_b32 v252, v11, 0, %s" % sSEL0, "v_cndmask_b32 v253, v11, 0, %s" % sSEL1,
                "v_cndmask_b32 v254, 0, v11, %s" % sSEL0, "v_cndmask_b32 v255, 0, v11, %s" % sSEL1]
    def ones(self, r): return ["v_mov_b32 v%d, 0x3f803f80" % (r + i) for i in range(4)]
    def cs_addr(self, which):
        return "v_mad_u32_u24 v13, s%d, v12, v%d" % (sW, vL16h), L_CS - 65536 + which * 12288
    def cs_park(self, which, r):
        A = self.A
        A("v_mov_b32 v12, 3072"); t, o = self.cs_addr(which); A(t)
        for u in range(3): A.lg("ds_write_b128 v13, %s offset:%d" % (vr(r + 4 * u, 4), o + u * 1024))
    def cs_fetch(self, which, r):
        t, o = self.cs_addr(which)
        return ["v_mov_b32 v12, 3072", t] + [('lg', "ds_read_b128 %s, v13 offset:%d" % (vr(r + 4 * u, 4), o + u * 1024)) for u in range(3)]
    def xdma_setup(self):
        A = self.A
        A("s_lshl_b32 s%d, s%d, 14\ns_add_u32 s%d, s%d, s%d" % (sHst, sW, sB, sXB, sHst))
        self.soff.pop(0, None); self.soff.pop('m0', None)
    def xdma(self, ks): return self.dma(rWS, vL16, sB, ks * 1024, sHst, ks * 1024)

    def build(self):
        A = self.A; self.cold = []
        stop = OPT['stop']
        A("s_cmp_ge_u32 s2, 256\ns_cbranch_scc1 L_end")
        self.stamp()
        A("s_load_dwordx2 s[8:9], s[0:1], 0\ns_load_dwordx2 s[12:13], s[0:1], 48\ns_load_dwordx2 s[16:17], s[0:1], 64")
        A("v_lshrrev_b32 v11, 6, v0\nv_and_b32 v0, 63, v0")
        A("v_readfirstlane_b32 s%d, v11" % sW)
        A("s_and_b32 s3, s2, 7\ns_lshl_b32 s3, s3, 2\ns_lshr_b32 s%d, s2, 6\ns_add_u32 s%d, s%d, s3" % (sT, sT, sT))
        A("s_bfe_u32 s%d, s2, 0x30003" % sJ)
        A("s_getreg_b32 s%d, hwreg(HW_REG_XCC_ID, 0, 4)" % sXCC)
        A("s_mov_b32 s10, 0x200000\ns_mov_b32 s11, 0x20000\ns_mov_b32 s14, 0x200000\ns_mov_b32 s15, 0x20000")
        A("s_mov_b32 s18, %d\ns_mov_b32 s19, 0x20000\ns_mov_b32 s22, %d\ns_mov_b32 s23, 0x20000" % (WS_SZ, 86 * 16384))
        A("s_mov_b32 s%d, 0x200000\ns_mov_b32 s%d, 0" % (sSPIN, sFAST))
        A("s_lshr_b32 s%d, s%d, 1\ns_and_b32 s%d, s%d, 1" % (sNH, sW, sKH, sW))
        A("v_lshlrev_b32 v%d, 4, v0" % vL16)
        A("v_and_b32 v11, 31, v0\nv_lshrrev_b32 v12, 5, v0\nv_lshlrev_b32 v13, 10, v11\nv_lshl_add_u32 v13, v12, 4, v13")
        A("s_lshl_b32 s{0}, s{1}, 1\ns_add_u32 s{0}, s{0}, s{2}\ns_lshl_b32 s{0}, s{0}, 15".format(sNAT, sT, sKH))
        A("s_lshl_b32 s{0}, s{1}, 1\ns_add_u32 s{0}, s{0}, s{2}".format(sA, sJ, sNH))
        A("s_lshl_b32 s3, s%d, 6\ns_add_u32 s%d, s%d, s3" % (sA, sNAT, sNAT))
        A("v_and_b32 v14, 15, v0\nv_lshrrev_b32 v10, 4, v0\nv_lshlrev_b32 v15, 10, v14\nv_lshl_add_u32 v15, v10, 4, v15")
        A("s_lshl_b32 s{0}, s{1}, 2\ns_add_u32 s{0}, s{0}, s{2}".format(sB, sJ, sW))
        A("s_lshl_b32 s3, s%d, 14" % sB)
        for s in range(3): A("s_add_u32 s%d, s3, %d" % (sWQ[s], WS_WQ + s * 32 * 16384))
        A("s_add_u32 s%d, s3, %d" % (sWO, WS_WO))
        A("s_mul_i32 s%d, s%d, %d\ns_add_u32 s%d, s%d, %d" % (sW2, sB, 43 * 1024, sW2, sW2, WS_W2))
        A("s_lshl_b32 s%d, s%d, 14" % (sHst, sW))
        A("s_lshl_b32 s3, s%d, 16\ns_add_u32 s%d, s3, s%d" % (sT, sXst, sHst))
        A("s_waitcnt lgkmcnt(0)")
        A("s_load_dwordx2 s[%d:%d], s[16:17], %d" % (sE, sE + 1, WS_E))
        t1 = A.vm("buffer_load_dwordx4 v[80:83], v13, %s, s%d offen" % (rX, sNAT))
        t1 = A.vm("buffer_load_dwordx4 v[84:87], v13, %s, s%d offen offset:32" % (rX, sNAT))
        xt = {}
        def x0dma(ks): xt[ks] = self.dma(rX, 15, sXst, ks * 64, sHst, ks * 1024, flags='')
        self.push([('WQ', n) for n in range(48)])
        for c in range(2):
            x0dma(2 * c); x0dma(2 * c + 1); self.bg(6)
        A("s_add_u32 s20, s16, %d\ns_addc_u32 s21, s17, 0" % WS_W1)
        A("v_add_u32 v%d, 0x10000, v%d" % (vL16h, vL16))
        A("s_mul_i32 s3, s%d, 3072\nv_add_u32 v%d, s3, v%d" % (sKH, vKeep, vL16))
        A("s_lshl_b32 s3, s%d, 10\ns_add_u32 s3, s3, 1024\nv_add_u32 v%d, s3, v%d" % (sKH, vSend, vL16))
        A("v_bfe_u32 v5, v0, 4, 1\nv_lshlrev_b32 v5, 14, v5\nv_lshl_add_u32 v5, v12, 8, v5\nv_lshl_add_u32 v5, v14, 4, v5")
        A("v_lshlrev_b32 v%d, 2, v11" % vFlag)
        A("v_lshlrev_b32 v7, 5, v11\nv_lshl_add_u32 v7, v12, 2, v7")
        A("v_lshlrev_b32 v8, 11, v10\nv_lshl_add_u32 v8, v14, 5, v8")
        A("v_lshlrev_b32 v9, 3, v14\nv_add_u32 v9, %d, v9" % L_ST)
        A("v_and_b32 v11, 1, v0\nv_cmp_eq_u32 %s, 1, v11" % sPAR)
        A("v_lshl_add_u32 v11, v10, 2, v11\nv_cmp_le_u32 %s, v11, v14" % sSEL0)
        A("v_add_u32 v11, 2, v11\nv_cmp_le_u32 %s, v11, v14" % sSEL1)
        A("v_lshlrev_b32 v10, 4, v10\nv_add_u32 v10, %d, v10" % L_SM)
        A("s_lshl_b32 s3, s%d, 16\ns_add_u32 s%d, s3, %d" % (sT, sXB, WS_XB))
        A("s_mul_i32 s3, s%d, %d\ns_add_u32 s%d, s3, %d" % (sT, HB_SZ, sHB, WS_HB))
        A("s_lshl_b32 s3, s%d, 7\ns_add_u32 s%d, s3, %d" % (sT, sFT, WS_FT))
        A("s_lshl_b32 s3, s%d, 2\ns_add_u32 s%d, s%d, s3" % (sB, sFTm, sFT))
        A("s_mul_i32 s3, s%d, 11\ns_mul_i32 s%d, s%d, 3\ns_add_u32 s3, s3, s%d\ns_lshl_b32 s%d, s3, 14" % (sJ, sW1[0], sW, sW1[0], sW1[0]))
        A("s_add_u32 s%d, s%d, 16384\ns_add_u32 s%d, s%d, 32768" % (sW1[1], sW1[0], sW1[2], sW1[0]))
        A("s_cmp_eq_u32 s%d, 3\ns_cselect_b32 s%d, %d, s%d" % (sW, sW1[2], OOB, sW1[2]))
        A("s_lshl_b32 s3, s%d, 13\ns_add_u32 s%d, s3, %d" % (sT, sSBc, WS_SB))
        A("s_lshr_b32 s3, s{0}, 2\ns_lshl_b32 s3, s3, 11\ns_add_u32 s{1}, s{2}, s3\ns_and_b32 s3, s{0}, 3\ns_lshl_b32 s3, s3, 3\ns_add_u32 s{1}, s{1}, s3".format(sA, sSBp, sSBc))
        A("s_lshl_b32 s3, s%d, 10\ns_add_u32 s%d, s%d, s3" % (sKH, sSBp, sSBp))
        A("s_max_u32 s3, s%d, 1\ns_sub_u32 s%d, s3, 1" % (sT, sTAG))
        A("s_lshl_b32 s3, s%d, 13\ns_add_u32 s%d, s3, %d" % (sTAG, sSBh, WS_SB + 3 * 512))
        A("s_lshl_b32 s3, s%d, 9\ns_add_u32 s%d, s%d, s3" % (sW, sSBc, sSBc))
        A("s_lshl_b32 s3, s%d, 14\ns_add_u32 s%d, s3, %d\ns_lshl_b32 s3, s%d, 12\ns_add_u32 s%d, s%d, s3" % (sTAG, sHXc, WS_HX, sW, sHXc, sHXc))
        A("s_lshl_b32 s3, s%d, 14\ns_add_u32 s%d, s3, %d\ns_lshl_b32 s3, s%d, 10\ns_add_u32 s%d, s%d, s3" % (sT, sHXp, WS_HX - 16384, sA, sHXp, sHXp))
        A("s_cmp_eq_u32 s%d, 0\ns_cselect_b32 s%d, %d, s%d" % (sKH, sHXp, OOB, sHXp))
        A("s_mov_b32 s3, 0x7f800000\ns_cmp_eq_u32 s%d, 0\ns_cselect_b32 s%d, %s, s3" % (sT, sLIM, fbits(-1e30)))
        A("s_lshl_b32 s3, s%d, 8\nv_mov_b32 v124, s3\ns_lshl_b32 s3, s%d, 8\nv_mov_b32 v125, s3" % (sT, sTAG))
        A("v_cmp_gt_u32 vcc, 32, v0\nv_cndmask_b32 v124, v125, v124, vcc\nv_lshl_add_u32 v124, v%d, 1, v124\nv_add_u32 v124, %d, v124" % (vFlag, WS_F0))
        for t in self.ones(248): A(t)
        A.wait(vm=t1)
        for i in range(8):
            A("v_lshlrev_b32 v%d, 16, v%d\nv_and_b32 v%d, 0xffff0000, v%d" % (vRes + 2 * i, 80 + i, vRes + 2 * i + 1, 80 + i))
        A("v_mov_b32 v125, v15")
        self.stats_make(); self.stats_store(0)
        A("v_mov_b32 v15, v125")
        self.park()
        A("v_mov_b32 v14, -1\nv_mov_b32 v80, -1\nv_mov_b32 v81, -1\nv_mov_b32 v82, -1\nv_mov_b32 v83, -1\nv_mov_b32 v12, 0")
        for u in (1, 2, 3): self.stats_store(u)
        self.soff.pop(1, None)
        A("s_mov_b32 exec_lo, 0xffff0000\ns_mov_b32 exec_hi, 0xffff0000")
        for h in range(2): A.vm("buffer_store_dwordx4 v[80:83], v%d, %s, s%d offen offset:%d sc1" % (vXst, rWS, sHXp, h * 512))
        A("s_mov_b64 exec, 1")
        tclr = A.vm("buffer_store_dword v12, v12, %s, s%d offen sc1" % (rWS, sFTm))
        A("s_mov_b64 exec, -1")
        A("s_waitcnt lgkmcnt(0)"); A.lg_done = A.lg_n
        A("s_mul_i32 s{0}, s{1}, 0x9E3779B1\ns_add_u32 s{0}, s{0}, 0x7F4A7C15\ns_and_b32 s{0}, s{0}, 0xfffffff0".format(sTAG, sE))
        A("s_add_u32 s%d, s%d, 0x85EBCA6B" % (sTAG + 1, sE + 1))
        self.stamp()
        st = {}
        F = []
        def f0_store():
            A.wait(vm=tclr)
            A("s_or_b32 s3, s%d, s%d\nv_mov_b32 v12, s3\nv_mov_b32 v13, s%d\nv_mov_b32 v11, 0" % (sTAG, sXCC, sTAG + 1))
            A("s_sub_u32 s3, s%d, %d\ns_lshl_b32 s3, s3, 1\ns_add_u32 s3, s3, %d" % (sFTm, WS_FT, WS_F0))
            A("s_mov_b64 exec, 1")
            A.vm("buffer_store_dwordx2 v[12:13], v11, %s, s3 offen sc1" % rWS)
            A("s_mov_b64 exec, -1")
        def f0_load(): st['f0'] = A.vm("buffer_load_dwordx2 v[126:127], v124, %s, 0 offen sc1" % rWS)
        def f0_check():
            A.wait(vm=st['f0'])
            chk = ["v_and_b32 v11, -16, v126", "v_xor_b32 v11, s%d, v11" % sTAG, "v_xor_b32 v12, s%d, v127" % (sTAG + 1), "v_or_b32 v11, v11, v12", "v_cmp_ne_u32 vcc, 0, v11"]
            l1, l2 = self.label('retry'), self.label('got')
            for c in chk: A(c)
            A("s_cbranch_vccnz %s\n%s:" % (l1, l2))
            self.cold.append("%s:\ns_sleep 2\nbuffer_load_dwordx2 v[126:127], v124, %s, 0 offen sc1" % (l1, rWS))
            self.cold.append("s_sub_u32 s%d, s%d, 1\ns_cbranch_scc1 L_end\ns_waitcnt vmcnt(0)" % (sSPIN, sSPIN))
            self.cold += chk
            self.cold.append("s_cbranch_vccnz %s\ns_branch %s" % (l1, l2))
            A("v_and_b32 v11, 15, v126\nv_cmp_ne_u32 vcc, s%d, v11" % sXCC)
            A("s_cmp_eq_u32 vcc_lo, 0\ns_cselect_b32 s%d, %d, 0" % (sFAST, 0 if OPT['force_slow'] else 1))
            st['s'] = self.stats_load(sSBc, 0, 108); st['h'] = self.stats_load(sSBh, 0, 116)
            A.vm("buffer_load_dword v125, v%d, %s, s%d offen sc1" % (vFlag, rWS, sFT))
        def halo0():
            A("s_lshl_b32 s3, s%d, 16\ns_sub_u32 s3, s3, 16384\ns_max_i32 s3, s3, 0\ns_lshl_b32 s%d, s%d, 8\ns_add_u32 s%d, s%d, s3" % (sT, sB, sW, sB, sB))
            A("s_lshl_b32 s%d, s%d, 12" % (sHst, sW))
            self.soff.pop('m0', None)
            for u in range(4): st['halo'] = self.dma(rX, 15, sB, u * 64, sHst, 65536 + u * 1024, flags='')
        def hook(ks, i):
            c = ks >> 1; n = (ks & 1) * 12 + i
            if c + 2 < 8:
                if n in (0, 3): x0dma(2 * (c + 2) + n // 3)
                elif n in (6, 9, 12, 15, 18, 21): self.bg(1)
            else:
                if ks == 12 and i == 0: halo0(); self.push([('WO1', k) for k in range(16)] + [('W11', k) for k in range(27)])
                elif n % 3 == 0: self.bg(1)
            if ks == 4 and i == 1: f0_store()
            if ks == 8 and i == 1: f0_load()
            if ks == 10 and i == 1: f0_check()
            if ks == 11 and i == 1: F.extend(self.masks())
            if ks == 13 and i == 1:
                A.wait(vm=st['h']); F.extend(self.stats_finish(108) + self.stats_finish(116, tile=4))
            for _ in range(2):
                if F: self.emit(F.pop(0))
        accq = lambda ct, tt: vAcc + 16 * ct + 4 * tt
        self.gemm1('WQ', Xslot, accq, lambda ct: ct == 2, (236, 248), {2 * c: c for c in range(8)}, lambda ks: xt[ks + 1], hook)
        while F: self.emit(F.pop(0))
        self.stamp()
        self.cs_park(0, 236)
        A.wait(vm=st['halo'], lg=A.lg_n); A("s_barrier")
        for layer in (1, 2):
            ph = 4 * (layer - 1)
            tok = self.attention(layer, lambda: None)
            self.stamp()
            self.publish(tok, ph + 1)
            if layer == 1: self.push([('W11', k) for k in range(43, 48)])
            self.bg(6)
            A("v_lshl_add_u32 v13, s%d, 12, v%d\nv_add_u32 v13, %d, v13" % (sW, vL16h, L_PARK - 65536))
            if stop == ph + 1: break
            self.poll(ph + 1)
            wk = 'WO%d' % layer
            def hook(i, h):
                if h == 0: self.push([('W11', 27 + i) if layer == 1 else ('W12', 32 + i)])
            rt = self.gemm2(16, wk, (lambda i: Yslot(27 + i)) if layer == 1 else (lambda i: Xslot(3 * i)), True, hook)
            self.q.sort(key=lambda k: k[1])
            self.bg(4)
            A("s_lshl_b32 s3, s{0}, 1\ns_add_u32 s3, s3, s{1}\ns_lshl_b32 s3, s3, 10\ns_lshl_b32 s{2}, s{3}, 15\ns_add_u32 s{2}, s{2}, s3\ns_add_u32 s{2}, s{2}, s{4}".format(sJ, sNH, sXst, sKH, sXB))
            for u in range(4):
                A.wait(lg=rt[u])
                for h in (0, 2): A("v_pk_add_f32 v[%d:%d], v[%d:%d], v[%d:%d]" % (vRes + 4 * u + h, vRes + 4 * u + h + 1, vAcc + 4 * u + h, vAcc + 4 * u + h + 1, 64 + 4 * u + h, 64 + 4 * u + h + 1))
            self.xpack()
            tok = self.stores(["buffer_store_dwordx4 %s, v%d, %s, s%d offen offset:%d" % (vr(80 + 4 * h, 4), vXst, rWS, sXst, h * 512) for h in range(2)])
            self.stamp()
            self.stats_make()
            self.publish(tok, ph + 2)
            self.bg(6)
            self.xdma_setup()
            if stop == ph + 2: break
            self.poll(ph + 2)
            xt = {}
            for ks in range(8): xt[ks] = self.xdma(ks)
            use = 2 * layer - 1
            F = []
            if layer == 1: F += self.ones(120)
            while F: self.emit(F.pop(0))
            def hook(ks, i):
                if ks < 2 and i % 3 == 0: xt[8 + 4 * ks + i // 3] = self.xdma(8 + 4 * ks + i // 3)
                if ks == 2 and i == 0: self.stats_store(use); self.soff.pop(1, None)
                if layer == 1 and i == 11: self.push([('W2', k) for k in range(3 * ks, min(3 * ks + 3, 43))])
                if ks >= 2 and i % 4 == 1: self.bg(1)
                if ks == 8 and i == 0: st['s'] = self.stats_load(sSBc, use, 80)
                if ks == 9 and i == 0 and layer == 2: F.extend(self.cs_fetch(1, 108))
                if ks == 12 and i == 0:
                    self.sentinel_check(st['s'], list(range(80, 88)),
                        ["s_add_u32 s3, s%d, %d" % (sSBc, use * 32 * 8192)] + ["buffer_load_dwordx4 %s, v%d, %s, s3 offen offset:%d sc1" % (vr(80 + 4 * h, 4), vSBc, rWS, 16 * h) for h in range(2)])
                    F.extend(self.stats_finish(80))
                if F: self.emit(F.pop(0))
            acc1 = lambda ct, tt: vAcc + 16 * ct + 4 * tt
            grp = {0: 1, 2: 3, 4: 7, 8: 15}
            self.gemm1('W11' if layer == 1 else 'W12', Yslot if layer == 1 else self.w12, acc1, lambda ct: False, (108, 120) if layer == 1 else None, grp, lambda ks: xt[grp[ks]], hook)
            while F: self.emit(F.pop(0))
            self.stamp()
            A.wait_all_lg(); A("s_barrier")
            tk = [A.lg("ds_read_b64 v[%d:%d], v%d offset:%d" % (80 + 2 * t, 81 + 2 * t, vStA, t * 128)) for t in range(4)]
            if layer == 1: self.cs_park(1, 108)
            for ct in range(3):
                A("s_lshr_b32 s3, s%d, 3\ns_add_u32 s%d, s3, s%d" % (sW1[ct], sA, sHB))
                for p in range(2):
                    r = 88 + 4 * ((2 * ct + p) % 5)
                    for tt in (2 * p, 2 * p + 1):
                        A.wait(lg=tk[tt])
                        a = acc1(ct, tt)
                        for h in (0, 2): A("v_pk_fma_f32 v[%d:%d], v[%d:%d], v[%d:%d], v[%d:%d] op_sel:[0,0,0] op_sel_hi:[1,0,1]" % (a + h, a + h + 1, 108 + 4 * ct + h, 109 + 4 * ct + h, 80 + 2 * tt, 81 + 2 * tt, a + h, a + h + 1))
                        for h in (0, 2): A("v_cvt_pk_bf16_f32 v%d, v%d, v%d" % (r + 2 * (tt & 1) + h // 2, a + h, a + h + 1))
                    for k in range(4): A("v_pk_max_i16 v%d, v%d, 0" % (r + k, r + k))
                    A("v_permlane16_swap_b32 v%d, v%d" % (r, r + 2)); A("v_permlane16_swap_b32 v%d, v%d" % (r + 1, r + 3))
                    tok = self.stores(["buffer_store_dwordx4 %s, v%d, %s, s%d offen offset:%d" % (vr(r, 4), vL16, rWS, sA, p * 1024)])
            self.stamp()
            self.publish(tok, ph + 3)
            self.bg(6)
            if stop == ph + 3: break
            self.poll(ph + 3)
            def hook(i, h):
                if h == 0: self.bg(1)
                if i == 40 and h == 0:
                    A("v_lshl_add_u32 v11, s%d, 7, v%d\nv_add_u32 v11, %d, v11" % (sKH, vFlag, L_SR))
                    st['r'] = A.lg("ds_read_b32 v14, v11")
            rt = self.gemm2(43, 'W2' if layer == 1 else None, Yslot, False, hook)
            for u in range(4):
                A.wait(lg=rt[u])
                for h in (0, 2):
                    a = vAcc + 4 * u + h
                    A("v_pk_add_f32 v[%d:%d], v[%d:%d], v[%d:%d]" % (a, a + 1, a, a + 1, 64 + 4 * u + h, 64 + 4 * u + h + 1))
                for h in (0, 2):
                    a = vAcc + 4 * u + h; r = vRes + 4 * u + h
                    A("v_pk_fma_f32 v[%d:%d], v[%d:%d], v[14:15], v[%d:%d] op_sel:[0,0,0] op_sel_hi:[1,0,1]" % (r, r + 1, a, a + 1, r, r + 1))
            self.xpack()
            if layer == 2:
                A("v_lshlrev_b32 v13, 8, v%d\nv_lshrrev_b32 v12, 9, v%d\nv_lshl_add_u32 v13, v12, 4, v13" % (vFlag, vL16))
                for h in range(2): A.vm("buffer_store_dwordx4 %s, v13, %s, s%d offen offset:%d" % (vr(80 + 4 * h, 4), rOUT, sNAT, h * 32))
                self.stamp()
                break
            tok = self.stores(["buffer_store_dwordx4 %s, v%d, %s, s%d offen offset:%d" % (vr(80 + 4 * h, 4), vXst, rWS, sXst, h * 512) for h in range(2)])
            self.stamp()
            self.stats_make()
            self.publish(tok, ph + 4)
            self.park()
            self.xdma_setup()
            if stop == ph + 4: break
            self.poll(ph + 4)
            xt = {}
            for ks in range(8): xt[ks] = self.xdma(ks)
            F = []
            hl = ["buffer_load_dwordx4 %s, v%d, %s, s%d offen offset:%d sc1" % (vr(16 + 4 * u, 4), vL16, rWS, sHXc, u * 1024) for u in range(4)]
            def hook(ks, i):
                if ks < 2 and i % 3 == 0: xt[8 + 4 * ks + i // 3] = self.xdma(8 + 4 * ks + i // 3)
                if ks == 2 and i == 0:
                    self.stats_store(2); self.soff.pop(1, None)
                    A("s_mov_b32 exec_lo, 0xffff0000\ns_mov_b32 exec_hi, 0xffff0000")
                    for h in range(2): A.vm("buffer_store_dwordx4 %s, v%d, %s, s%d offen offset:%d sc1" % (vr(80 + 4 * h, 4), vXst, rWS, sHXp, h * 512))
                    A("s_mov_b64 exec, -1\ns_nop 3")
                if i == 11: self.push([('WO2', ks)])
                if ks >= 2 and i % 6 == 1: self.bg(1)
                if ks == 3 and i == 0: F.extend(self.cs_fetch(0, 236) + self.ones(248) + self.masks())
                if ks == 8 and i == 0:
                    st['s'] = self.stats_load(sSBc, 2, 108); st['h'] = self.stats_load(sSBh, 2, 116)
                    for t in hl: st['hx'] = A.vm(t)
                if ks == 12 and i == 0:
                    rl = []
                    for sb, r in ((sSBc, 108), (sSBh, 116)):
                        rl += ["s_add_u32 s3, s%d, %d" % (sb, 2 * 32 * 8192)] + ["buffer_load_dwordx4 %s, v%d, %s, s3 offen offset:%d sc1" % (vr(r + 4 * h, 4), vSBc, rWS, 16 * h) for h in range(2)]
                    self.sentinel_check(st['hx'], list(range(108, 124)) + list(range(16, 32)), rl + hl)
                    F.append("v_lshl_add_u32 v13, s%d, 12, v%d" % (sW, vL16h))
                    F.extend([('lg', "ds_write_b128 v13, %s offset:%d" % (vr(16 + 4 * u, 4), u * 1024)) for u in range(4)])
                    F.extend(self.stats_finish(108) + self.stats_finish(116, tile=4))
                for _ in range(2 if ks >= 12 else 1):
                    if F: self.emit(F.pop(0))
            grp = {0: 1, 2: 3, 4: 7, 8: 15}
            self.gemm1(None, Xslot, accq, lambda ct: ct == 2, None, grp, lambda ks: xt[grp[ks]], hook)
            while F: self.emit(F.pop(0))
            self.stamp()
            A.wait_all_lg(); A("s_barrier")
        A("s_or_b32 s3, s2, s%d\ns_cmp_lg_u32 s3, 0\ns_cbranch_scc1 L_noE" % sW)
        A("v_mov_b32 v12, s%d\nv_mov_b32 v13, s%d\nv_mov_b32 v11, 0\ns_mov_b64 exec, 1" % (sTAG, sTAG + 1))
        A("buffer_store_dwordx2 v[12:13], v11, %s, 0 offen sc1\ns_mov_b64 exec, -1" % rWS)
        A("L_noE:")
        if OPT['prof']:
            A("s_waitcnt vmcnt(0)\ns_memtime s[100:101]\ns_waitcnt lgkmcnt(0)")
            A("s_lshl_b32 s3, s2, 2\ns_add_u32 s3, s3, s%d\ns_lshl_b32 s3, s3, 7\ns_add_u32 s3, s3, %d\nv_mov_b32 v11, 0" % (sW, WS_PROF))
            for i in range(19):
                A("v_mov_b32 v12, s%d" % (sST0 + 2 * i))
                A("buffer_store_dword v12, v11, %s, s3 offen offset:%d" % (rWS, 4 * i))
            A("v_mov_b32 v12, s%d\nbuffer_store_dword v12, v11, %s, s3 offen offset:124" % (sFAST, rWS))
        A("L_end:\ns_endpgm")
        for c in self.cold: A(c)
        return A.L

def header():
    src = open(os.path.join(os.path.dirname(os.path.abspath(__file__)), "..", "cdna_kernels", NAME + ".s.ref")).read()
    return [l for l in src.split('\n') if l.startswith(';') and '@launch' not in l and 'Override' not in l and 'grid=' not in l]

if __name__ == "__main__":
    out = header()
    out.append("; @launch kernel=pre_kernel grid=(302,1,1) block=(256,1,1) lds=16384")
    out.append("; @launch kernel=main_kernel grid=(256,1,1) block=(256,1,1) lds=%d" % LDS_BYTES)
    out.append('.amdgcn_target "amdgcn-amd-amdhsa--gfx950"\n.text')
    for name, lines, nv, ao in (("pre_kernel", gen_pre(), 32, 32), ("main_kernel", Main().build(), 512, 256)):
        lines, added = pad_hazards(lines)
        sys.stderr.write("%s: %d lines, %d pad states\n" % (name, len(lines), added))
        out.append(".globl %s\n.p2align 8\n.type %s,@function\n%s:" % (name, name, name))
        out += ["    " + l if not l.endswith(':') else l for l in lines]
        out.append(KDESC % (name, nv, ao))
    open(sys.argv[1], "w").write("\n".join(out) + "\n")
```

```python
import sys, os
sys.path.insert(0, os.path.dirname(os.path.abspath(__file__)))
from asmlib import *

NAME = "interleave_layers__sliding_local_dilated__dense_activation_relu__prompt"
OPT = dict(prof=0, stop=99, force_slow=0, ea=-1, eb=-1)
for a in sys.argv[2:]:
    k, v = a.split('='); OPT[k] = int(v)

WS_E, WS_F0, WS_FT = 0, 0x1000, 0x4000
WS_SB = 0x10000
WS_HX = 0x110000
WS_XB = 0x200000
WS_HB = 0x400000
HB_SZ = 176 * 1024
WS_WQ, WS_WO, WS_W1, WS_W2 = 0xA00000, 0xB80000, 0xC00000, 0xD80000
WS_PROF = 0xF00000
WS_SZ = 0x1000000
OOB = 0x08000000
L_A = 0
L_RED = 81920
L_PARK = 98304
L_CS = 114688
L_ST = 139264
L_SM = L_ST + 1024
L_SR = L_ST + 1536
LDS_BYTES = 143360

KDESC = """.section .rodata,"a"
.p2align 6
.amdhsa_kernel %s
  .amdhsa_next_free_vgpr %d
  .amdhsa_next_free_sgpr 102
  .amdhsa_accum_offset %d
  .amdhsa_group_segment_fixed_size 0
  .amdhsa_kernarg_size 72
  .amdhsa_user_sgpr_count 2
  .amdhsa_user_sgpr_kernarg_segment_ptr 1
  .amdhsa_system_sgpr_workgroup_id_x 1
  .amdhsa_float_denorm_mode_32 3
.end_amdhsa_kernel
.text"""

def gen_pre():
    A = Asm()
    A("s_cmp_ge_u32 s2, 302\ns_cbranch_scc1 P_end")
    A("s_load_dwordx4 s[4:7], s[0:1], 8")
    A("s_load_dwordx4 s[8:11], s[0:1], 32")
    A("s_load_dwordx2 s[16:17], s[0:1], 64")
    A("v_lshrrev_b32 v1, 6, v0\nv_and_b32 v0, 63, v0")
    A("v_readfirstlane_b32 s3, v1")
    A("s_lshl_b32 s20, s2, 2\ns_add_u32 s20, s20, s3")
    A("s_lshl_b32 s21, s3, 12")
    A("s_mov_b32 s18, %d\ns_mov_b32 s19, 0x20000\ns_mov_b32 s15, 0x20000" % WS_SZ)
    A("s_waitcnt lgkmcnt(0)")
    A("s_mov_b32 s12, s4\ns_mov_b32 s13, s5\ns_mov_b32 s14, %d" % (512 * 3072))
    A("s_mov_b32 s22, 3072\ns_mov_b32 s23, %d\ns_mov_b32 s24, 16384\ns_mov_b32 s25, s20\ns_mov_b32 s30, 96" % WS_WQ)
    A("s_cmp_lt_u32 s20, 384\ns_cbranch_scc1 P_typeA")
    A("s_mov_b32 s12, s8\ns_mov_b32 s13, s9\ns_mov_b32 s14, %d" % (512 * 2752))
    A("s_mov_b32 s22, 2752\ns_mov_b32 s23, %d\ns_sub_u32 s25, s20, 384\ns_mov_b32 s30, 86" % WS_W1)
    A("s_cmp_lt_u32 s20, 736\ns_cbranch_scc1 P_typeA")
    A("s_mov_b32 s12, s6\ns_mov_b32 s13, s7\ns_mov_b32 s14, %d" % (512 * 1024))
    A("s_mov_b32 s22, 1024\ns_mov_b32 s23, %d\ns_sub_u32 s25, s20, 736" % WS_WO)
    A("s_cmp_lt_u32 s20, 864\ns_cbranch_scc1 P_typeB")
    A("s_mov_b32 s12, s10\ns_mov_b32 s13, s11\ns_mov_b32 s14, %d" % (1376 * 1024))
    A("s_mov_b32 s23, %d\ns_sub_u32 s25, s20, 864\ns_mov_b32 s24, %d" % (WS_W2, 43 * 1024))
    A("P_typeB:")
    A("s_lshr_b32 s26, s25, 3\ns_and_b32 s27, s25, 7\ns_mov_b32 s31, 1\ns_mov_b32 s30, 1000")
    A("v_lshrrev_b32 v2, 5, v0\nv_lshlrev_b32 v2, 10, v2")
    A("v_bfe_u32 v3, v0, 2, 2\nv_lshl_add_u32 v2, v3, 7, v2")
    A("v_bfe_u32 v3, v0, 4, 1\nv_lshl_add_u32 v2, v3, 5, v2")
    A("v_and_b32 v3, 1, v0\nv_lshl_add_u32 v2, v3, 4, v2")
    A("v_bfe_u32 v3, v0, 1, 1\nv_lshl_add_u32 v2, v3, 3, v2")
    A("s_branch P_go")
    A("P_typeA:")
    A("s_and_b32 s26, s25, 15\ns_lshr_b32 s27, s25, 4\ns_mov_b32 s31, 0")
    A("v_lshrrev_b32 v2, 4, v0\nv_lshlrev_b32 v2, 10, v2")
    A("v_bfe_u32 v3, v0, 2, 2\nv_lshl_add_u32 v2, v3, 7, v2")
    A("v_and_b32 v3, 3, v0\nv_lshl_add_u32 v2, v3, 3, v2")
    A("P_go:")
    A("v_add_u32 v2, s21, v2")
    A("s_mul_i32 s28, s26, s22\ns_lshl_b32 s28, s28, 5\ns_lshl_b32 s29, s27, 7\ns_add_u32 s28, s28, s29")
    A("v_lshrrev_b32 v4, 3, v0\nv_mul_lo_u32 v4, v4, s22\nv_and_b32 v3, 7, v0\nv_lshl_add_u32 v4, v3, 4, v4")
    A("v_add_u32 v4, s28, v4")
    A("s_lshl_b32 s29, s22, 3")
    for n in range(4):
        A("s_add_u32 s3, s21, %d\ns_mov_b32 m0, s3" % (n * 1024))
        A("buffer_load_dwordx4 v4, s[12:15], 0 offen lds")
        if n < 3: A("v_add_u32 v4, s29, v4")
    A("s_mul_i32 s28, s27, s24\ns_lshl_b32 s28, s28, 2\ns_add_u32 s28, s28, s23\ns_lshl_b32 s29, s26, 10\ns_add_u32 s28, s28, s29")
    A("v_lshlrev_b32 v5, 4, v0")
    A("s_lshl_b32 s27, s27, 2")
    A("s_waitcnt vmcnt(0)")
    A("s_cmp_eq_u32 s31, 0\ns_cbranch_scc1 P_rdA")
    for f in range(4):
        for hh in range(2):
            A("ds_read_b64_tr_b16 v[%d:%d], v2 offset:%d" % (8 + f * 4 + hh * 2, 9 + f * 4 + hh * 2, (f >> 1) * 64 + (f & 1) * 2048 + hh * 512))
    A("s_branch P_st")
    A("P_rdA:")
    for f in range(4):
        for hh in range(2):
            A("ds_read_b64_tr_b16 v[%d:%d], v2 offset:%d" % (8 + f * 4 + hh * 2, 9 + f * 4 + hh * 2, f * 32 + hh * 512))
    A("P_st:")
    A("s_waitcnt lgkmcnt(0)")
    for f in range(4):
        A("s_add_u32 s3, s27, %d\ns_cmp_ge_u32 s3, s30\ns_cbranch_scc1 P_end" % f)
        A("buffer_store_dwordx4 v[%d:%d], v5, s[16:19], s28 offen" % (8 + f * 4, 11 + f * 4))
        A("s_add_u32 s28, s28, s24")
    A("P_end:")
    A("s_endpgm")
    return A.L

sT, sJ, sW, sFAST = 4, 5, 6, 7
rX, rOUT, rWS, rW1 = 's[8:11]', 's[12:15]', 's[16:19]', 's[20:23]'
sNH, sKH = 24, 25
sWQ = [26, 27, 28]; sWO = 29; sW1 = [30, 31, 32]; sW2 = 33
sXB, sHB, sSBp, sSBc, sSBh, sFT, sFTm, sNAT = 34, 35, 36, 37, 38, 39, 40, 41
sHXp, sHXc, sHst, sLIM, sSPIN, sXst = 42, 43, 44, 45, 46, 47
sPAR, sSEL0, sSEL1 = 's[48:49]', 's[50:51]', 's[52:53]'
sTMP = [54, 55, 56]
sA, sB = 57, 58
sXCC = 59
sE, sTAG = 60, 62
sST0 = 64
vL16, vL16h, vKeep, vSend, vXst, vFlag, vSBp, vSBc, vStA, vStB = range(1, 11)
vRes = 16
vAcc = 32
vAf = 88
def Yslot(n): return vr(192 + 4 * n, 4, 'a') if n < 16 else vr(128 + 4 * (n - 16), 4, 'v')
def Xslot(n): return vr(4 * n, 4, 'a')
MF16 = 'v_mfma_f32_16x16x32_bf16'
MF32 = 'v_mfma_f32_32x32x16_bf16'
CEXP = 0.25 * 1.4426950408889634

import struct
def fbits(x): return '0x%08x' % struct.unpack('<I', struct.pack('<f', x))[0]

class Main:
    def __init__(self):
        self.A = Asm(); self.soff = {}; self.nst = 0; self.lbl = 0
        self.q = []
        self.tok = {}
    def stamp(self):
        if OPT['prof'] and self.nst < 18:
            self.A("s_memtime s[%d:%d]" % (sST0 + 2 * self.nst, sST0 + 2 * self.nst + 1))
        if OPT['ea'] == self.nst: self.A("s_memrealtime s[64:65]")
        if OPT['eb'] == self.nst: self.A("s_memrealtime s[66:67]")
        self.nst += 1
    def label(self, p):
        self.lbl += 1; return "L_%s_%d" % (p, self.lbl)
    def so(self, sbase, off, slot):
        hi = off & ~4095
        if hi == 0: return sbase, off
        if self.soff.get(slot) != (sbase, hi):
            self.A("s_add_u32 s%d, s%d, %d" % (sTMP[slot], sbase, hi)); self.soff[slot] = (sbase, hi)
        return sTMP[slot], off & 4095
    def wload(self, key):
        kind, n = key[0], key[1]
        if kind == 'WQ': dst, srd, sb, off, sl = Xslot(n), rWS, sWQ[n % 3], (n // 3) * 1024, n % 3
        elif kind == 'WO1': dst, srd, sb, off, sl = Yslot(27 + n), rWS, sWO, n * 1024, 0
        elif kind == 'WO2': dst, srd, sb, off, sl = Xslot(3 * n), rWS, sWO, n * 1024, 0
        elif kind == 'W11': dst, srd, sb, off, sl = Yslot(n), rW1, sW1[n % 3], (n // 3) * 1024, n % 3
        elif kind == 'W12': dst, srd, sb, off, sl = self.w12(n), rW1, sW1[n % 3], (n // 3) * 1024, n % 3
        elif kind == 'W2': dst, srd, sb, off, sl = Yslot(n), rWS, sW2, n * 1024, 0
        s, imm = self.so(sb, off, sl)
        self.tok[key] = self.A.vm("buffer_load_dwordx4 %s, v%d, %s, s%d offen offset:%d" % (dst, vL16, srd, s, imm))
    def w12(self, n): return Xslot(3 * (n >> 1) + 1 + (n & 1)) if n < 32 else Xslot(3 * (n - 32))
    def push(self, keys): self.q += list(keys)
    def bg(self, n=1):
        for _ in range(n):
            if self.q: self.wload(self.q.pop(0))
    def need(self, key):
        while key not in self.tok:
            assert self.q, key
            self.wload(self.q.pop(0))
        self.A.wait(vm=self.tok[key])
    def stores(self, texts):
        A = self.A
        l1, l2 = self.label('slow'), self.label('join')
        A("s_cmp_eq_u32 s%d, 0\ns_cbranch_scc1 %s" % (sFAST, l1))
        for t in texts: tok = A.vm(t)
        A("%s:" % l2)
        self.cold.append("%s:" % l1)
        for t in texts: self.cold.append(t + " sc1")
        self.cold.append("s_branch %s" % l2)
        return tok
    def publish(self, tok, phase):
        A = self.A
        A("v_mov_b32 v11, %d\nv_mov_b32 v12, 0" % phase)
        A.wait(vm=tok)
        A("s_mov_b64 exec, 1")
        self.stores(["buffer_store_dword v11, v12, %s, s%d offen" % (rWS, sFTm)])
        A("s_mov_b64 exec, -1")
    def poll(self, phase):
        A = self.A
        l, ok = self.label('poll'), self.label('pok')
        A("%s:" % l)
        A.vm("buffer_load_dword v11, v%d, %s, s%d offen sc1" % (vFlag, rWS, sFT))
        A("s_sub_u32 s%d, s%d, 1\ns_cbranch_scc1 L_end" % (sSPIN, sSPIN))
        A.wait_all_vm()
        A("v_cmp_gt_u32 vcc, %d, v11\ns_cbranch_vccnz %s" % (phase, l))
    def dma(self, srd, voff, sbase, off, ldsbase_s, ldsoff, flags='sc1', sep=False):
        A = self.A
        s, imm = self.so(sbase, off, 0)
        m = (ldsbase_s, ldsoff - imm)
        if self.soff.get('m0') != m:
            A("s_add_u32 m0, s%d, %d" % (ldsbase_s, (ldsoff - imm) & 0xffffffff)); self.soff['m0'] = m
        return A.vm("buffer_load_dwordx4 v%d, %s, s%d offen offset:%d %s lds" % (voff, srd, s, imm, flags))
    def lds(self, off):
        return ("v%d" % vL16, off) if off < 65536 else ("v%d" % vL16h, off - 65536)
    def stats_make(self):
        A = self.A; r = vRes
        A("v_pk_add_f32 v[12:13], v[%d:%d], v[%d:%d]" % (r, r + 1, r + 2, r + 3))
        A("v_pk_mul_f32 v[14:15], v[%d:%d], v[%d:%d]" % (r, r + 1, r, r + 1))
        for i in range(1, 8):
            if i > 1: A("v_pk_add_f32 v[12:13], v[12:13], v[%d:%d]" % (r + 2 * i, r + 2 * i + 1))
            A("v_pk_fma_f32 v[14:15], v[%d:%d], v[%d:%d], v[14:15]" % (r + 2 * i, r + 2 * i + 1, r + 2 * i, r + 2 * i + 1))
        A("v_add_f32 v12, v12, v13\nv_add_f32 v14, v14, v15")
        A("v_permlane32_swap_b32 v12, v14")
        A("v_add_f32 v14, v12, v14")
    def stats_store(self, use):
        s, imm = self.so(sSBp, use * 32 * 8192, 1)
        return self.A.vm("buffer_store_dword v14, v%d, %s, s%d offen offset:%d sc1" % (vSBp, rWS, s, imm))
    def stats_load(self, sbase, use, dst):
        A = self.A
        A("s_add_u32 s%d, s%d, %d" % (sA, sbase, use * 32 * 8192))
        A.vm("buffer_load_dwordx4 %s, v%d, %s, s%d offen sc1" % (vr(dst, 4), vSBc, rWS, sA))
        return A.vm("buffer_load_dwordx4 %s, v%d, %s, s%d offen offset:16 sc1" % (vr(dst + 4, 4), vSBc, rWS, sA))
    def sentinel_check(self, tok, regs, reload_lines):
        A = self.A
        A.wait(vm=tok)
        chk = []
        chk.append("v_max3_u32 v11, v%d, v%d, v%d" % tuple(regs[:3]))
        rest = regs[3:]
        while len(rest) >= 2:
            chk.append("v_max3_u32 v11, v11, v%d, v%d" % (rest[0], rest[1])); rest = rest[2:]
        if rest: chk.append("v_max_u32 v11, v11, v%d" % rest[0])
        chk.append("v_cmp_eq_u32 vcc, -1, v11")
        l1, l2 = self.label('retry'), self.label('got')
        for c in chk: A(c)
        A("s_cbranch_vccnz %s\n%s:" % (l1, l2))
        self.cold.append("%s:" % l1)
        self.cold += reload_lines
        self.cold.append("s_sub_u32 s%d, s%d, 1\ns_cbranch_scc1 L_end\ns_waitcnt vmcnt(0)" % (sSPIN, sSPIN))
        self.cold += chk
        self.cold.append("s_cbranch_vccnz %s\ns_branch %s" % (l1, l2))
    def stats_finish(self, r, tile_off_s=None, tile=None):
        F = []
        F.append("v_pk_add_f32 v[%d:%d], v[%d:%d], v[%d:%d]" % (r, r + 1, r, r + 1, r + 2, r + 3))
        F.append("v_pk_add_f32 v[%d:%d], v[%d:%d], v[%d:%d]" % (r + 4, r + 5, r + 4, r + 5, r + 6, r + 7))
        F.append("v_pk_add_f32 v[%d:%d], v[%d:%d], v[%d:%d]" % (r, r + 1, r, r + 1, r + 4, r + 5))
        F.append("v_permlane32_swap_b32 v%d, v%d" % (r, r + 1))
        F.append("v_add_f32 v%d, v%d, v%d" % (r, r, r + 1))
        F.append("v_mov_b32 v%d, v%d" % (r + 1, r))
        F.append("v_permlane16_swap_b32 v%d, v%d" % (r, r + 1))
        F.append("v_add_f32 v%d, v%d, v%d" % (r, r, r + 1))
        F.append("v_mov_b32 v%d, v%d" % (r + 1, r))
        F.append("v_permlane32_swap_b32 v%d, v%d" % (r, r + 1))
        F.append("v_mul_f32 v%d, %s, v%d" % (r, fbits(-1.0 / 512), r))
        F.append("v_mul_f32 v%d, %s, v%d" % (r + 1, fbits(1.0 / 512), r + 1))
        F.append("v_fma_f32 v%d, -v%d, v%d, v%d" % (r + 1, r, r, r + 1))
        F.append("v_max_f32 v%d, 0, v%d" % (r + 1, r + 1))
        F.append("v_add_f32 v%d, %s, v%d" % (r + 1, fbits(1e-5), r + 1))
        F.append("v_rsq_f32 v%d, v%d" % (r + 1, r + 1))
        if tile is None:
            F.append("v_lshl_add_u32 v%d, s%d, 7, v%d" % (r + 2, sW, vStA)); o = 0
        else:
            F.append("v_add_u32 v%d, %d, v%d" % (r + 2, tile * 128, vStA)); o = 0
        F.append("v_lshrrev_b32 v%d, 1, v%d" % (r + 3, r + 2))
        F.append("v_add_u32 v%d, %d, v%d" % (r + 3, L_SM - L_ST // 2, r + 3))
        F.append(('lg', "ds_write_b64 v%d, v[%d:%d]" % (r + 2, r, r + 1)))
        F.append(('lg', "ds_write2_b32 v%d, v%d, v%d offset0:0 offset1:128" % (r + 3, r, r + 1)))
        return F
    def emit(self, f):
        if callable(f): return f()
        if isinstance(f, tuple): return self.A.lg(f[1]) if f[0] == 'lg' else self.A.vm(f[1])
        self.A(f)
    def gemm1(self, wkey, wreg, acc, swap, cs, groups, gtok, hook):
        A = self.A; NB = 5
        rtok = {}
        def rd(f):
            ks, tt = f >> 2, f & 3
            if tt == 0 and ks in groups:
                A.wait(vm=gtok(ks)); A("s_barrier")
            v, o = self.lds(L_A + tt * 16384 + ks * 1024)
            rtok[f] = A.lg("ds_read_b128 %s, %s offset:%d" % (vr(vAf + 4 * (f % NB), 4), v, o))
        for f in range(4): rd(f)
        for ks in range(16):
            i = 0
            for tt in range(4):
                f = 4 * ks + tt
                for ct in range(3):
                    if tt == 0 and wkey: self.need((wkey, 3 * ks + ct))
                    if ct == 0: A.wait(lg=rtok[f])
                    a, b = wreg(3 * ks + ct), vr(vAf + 4 * (f % NB), 4)
                    if swap(ct): a, b = b, a
                    d = vr(acc(ct, tt), 4)
                    A("%s %s, %s, %s, %s" % (MF16, d, a, b, d if ks else '0'))
                    if ct == 0 and f + 4 < 64: rd(f + 4)
                    hook(ks, i); i += 1
                if cs is not None and tt < 3:
                    a, b = wreg(3 * ks + tt), vr(cs[1], 4)
                    if swap(tt): a, b = b, a
                    d = vr(cs[0] + 4 * tt, 4)
                    A("%s %s, %s, %s, %s" % (MF16, d, a, b, d if ks else '0'))
    def gemm2(self, ns, wkey, wreg, init_keep, hook):
        A = self.A
        nc = (ns + 3) // 4
        dtok = {}
        def dma1(c, u):
            sb = sB if (ns == 43 and c == nc - 1) else sA
            dtok[c] = self.dma(rWS, vL16, sb, c * 16384 + u * 1024, sHst, (c & 3) * 16384 + u * 1024)
        A("s_lshl_b32 s%d, s%d, 12" % (sHst, sW))
        A("s_add_u32 s%d, s%d, s%d" % (sA, sHB, sHst))
        A("s_cmp_eq_u32 s%d, 3\ns_cselect_b32 s%d, %d, s%d" % (sW, sB, OOB, sA))
        self.soff.pop(0, None); self.soff.pop('m0', None)
        for c in range(2):
            for u in range(4): dma1(c, u)
        if init_keep:
            for u in range(4):
                itok = A.lg("ds_read_b128 %s, v13 offset:%d" % (vr(vAcc + 4 * u, 4), u * 1024))
        rtok = {}
        def rd(i, h):
            c = i >> 2
            reg = 64 + (c & 1) * 32 + (i & 3) * 8 + h * 4
            rtok[(i, h)] = A.lg("ds_read_b128 %s, v%d offset:%d" % (vr(reg, 4), vSend if h else vKeep, (i & 15) * 4096))
        A.wait(vm=dtok[0]); A("s_barrier")
        self.stamp()
        for i in range(4):
            rd(i, 1); rd(i, 0)
            if nc > 2: dma1(2, i)
        for c in range(nc):
            steps = list(range(4 * c, min(4 * c + 4, ns)))
            nxt = list(range(4 * c + 4, min(4 * c + 8, ns)))
            pend = [(i, h) for i in nxt for h in (1, 0)]
            pd = list(range(4)) if c + 3 < nc else []
            n = 0
            for i in steps:
                for h in (1, 0):
                    if n == 2 and nxt:
                        A.wait(vm=dtok[c + 1], lg=A.lg_n); A("s_barrier")
                    if h == 1 and wkey: self.need((wkey, i))
                    A.wait(lg=rtok[(i, h)])
                    reg = 64 + (c & 1) * 32 + (i & 3) * 8 + h * 4
                    d = vr(vAcc + 16 * h, 16)
                    cin = d if (i or (h == 0 and init_keep)) else '0'
                    A("%s %s, %s, %s, %s" % (MF32, d, wreg(i), vr(reg, 4), cin))
                    if n >= 2:
                        for _ in range(2):
                            if pend: rd(*pend.pop(0))
                        if pd: dma1(c + 3, pd.pop(0))
                    hook(i, h); n += 1
            assert not pend and not pd
        A("v_lshl_add_u32 v12, s%d, 12, v%d" % (sW, vL16h))
        A("v_xor_b32 v13, 0x1000, v12")
        for u in range(4): A.lg("ds_write_b128 v12, %s offset:%d" % (vr(vAcc + 16 + 4 * u, 4), L_RED - 65536 + u * 1024))
        A.wait_all_lg(); A("s_barrier")
        for u in range(4): rtok[u] = A.lg("ds_read_b128 %s, v13 offset:%d" % (vr(64 + 4 * u, 4), L_RED - 65536 + u * 1024))
        return rtok
    def xpack(self):
        for i in range(8): self.A("v_cvt_pk_bf16_f32 v%d, v%d, v%d" % (80 + i, vRes + 2 * i, vRes + 2 * i + 1))
    def park(self):
        A = self.A
        A("v_lshl_add_u32 v13, s%d, 12, v%d" % (sW, vL16h))
        for u in range(4): A.lg("ds_write_b128 v13, %s offset:%d" % (vr(vRes + 4 * u, 4), L_PARK - 65536 + u * 1024))
    def attention(self, layer, halo_ready):
        A = self.A
        Q = lambda t: vAcc + 4 * t; K = lambda t: (vAcc + 16 + 4 * t) if t >= 0 else vAcc + 48; V = lambda t: (vAcc + 32 + 4 * t) if t >= 0 else vAcc + 52
        Qb = lambda t: 100 + 2 * t; Kb = lambda t: 110 + 2 * t; Vb = lambda t: 120 + 2 * t
        SA = lambda t: 16 + 2 * (t if t >= 0 else 4)
        tb = lambda t: t if t >= 0 else 4
        csQ, csK, csV, ones, M = 236, 240, 244, 248, 252
        P2 = lambda r: "v[%d:%d]" % (r, r + 1)
        LO = "op_sel:[0,0,0] op_sel_hi:[1,0,1]"
        tk = {}
        for t in (0, 1, 2, 3, -1): tk['A', t] = A.lg("ds_read_b64 %s, v%d offset:%d" % (P2(SA(t)), vStA, tb(t) * 128))
        def rdB(t, r):
            A.lg("ds_read_b128 %s, v%d offset:%d" % (vr(r, 4), vStB, tb(t) * 64))
            tk['B', t] = A.lg("ds_read_b128 %s, v%d offset:%d" % (vr(r + 4, 4), vStB, tb(t) * 64 + 512))
        def fixQ(t):
            A.wait(lg=tk['A', t])
            for h in (0, 2): A("v_pk_fma_f32 %s, %s, %s, %s %s" % (P2(Q(t) + h), P2(csQ + h), P2(SA(t)), P2(Q(t) + h), LO))
            for h in (0, 2): A("v_cvt_pk_bf16_f32 v%d, v%d, v%d" % (Qb(t) + h // 2, Q(t) + h, Q(t) + h + 1))
        def fixK(t):
            A.wait(lg=tk['A', t])
            for h in (0, 2): A("v_pk_fma_f32 %s, %s, %s, %s %s" % (P2(K(t) + h), P2(csK + h), P2(SA(t)), P2(K(t) + h), LO))
            for h in (0, 2): A("v_pk_mul_f32 %s, %s, %s op_sel:[0,1] op_sel_hi:[1,1]" % (P2(K(t) + h), P2(K(t) + h), P2(SA(t))))
            for h in (0, 2): A("v_cvt_pk_bf16_f32 v%d, v%d, v%d" % (Kb(t) + h // 2, K(t) + h, K(t) + h + 1))
        def fixV(t, r):
            A.wait(lg=tk['B', t])
            for h in (0, 2): A("v_pk_fma_f32 %s, %s, %s, %s %s" % (P2(V(t) + h), P2(r + h), P2(csV), P2(V(t) + h), LO))
            for h in (0, 2): A("v_pk_mul_f32 %s, %s, %s" % (P2(V(t) + h), P2(V(t) + h), P2(r + 4 + h)))
            for h in (0, 2): A("v_cvt_pk_bf16_f32 v%d, v%d, v%d" % (Vb(t) + h // 2, V(t) + h, V(t) + h + 1))
        def smm(t):
            A("v_mfma_f32_16x16x16_bf16 %s, %s, %s, 0" % (vr(Q(t), 4), P2(Kb(t)), P2(Qb(t))))
            A("v_mfma_f32_16x16x16_bf16 %s, %s, %s, 0" % (vr(K(t), 4), P2(Kb(t - 1)), P2(Qb(t))))
        def soft(t):
            c, p, P = Q(t), K(t), V(t)
            F = []
            F.append("v_cndmask_b32 v%d, v%d, v%d, %s" % (c, c, c + 1, sPAR))
            F.append("v_cndmask_b32 v%d, v%d, v%d, %s" % (c + 1, c + 2, c + 3, sPAR))
            F.append("v_cndmask_b32 v%d, v%d, v%d, %s" % (p, p, p + 1, sPAR))
            F.append("v_cndmask_b32 v%d, v%d, v%d, %s" % (p + 1, p + 2, p + 3, sPAR))
            if t == 0:
                F.append("v_min_f32 v%d, s%d, v%d" % (p, sLIM, p)); F.append("v_min_f32 v%d, s%d, v%d" % (p + 1, sLIM, p + 1))
            F.append("v_cndmask_b32 v%d, v%d, v%d, %s" % (c, p, c, sSEL0))
            F.append("v_cndmask_b32 v%d, v%d, v%d, %s" % (c + 1, p + 1, c + 1, sSEL1))
            F.append("v_mul_f32 v%d, %s, v%d" % (p + 3, fbits(CEXP), SA(t) + 1))
            F.append("v_max_f32 v%d, v%d, v%d" % (c + 2, c, c + 1))
            F.append("v_mov_b32 v%d, v%d" % (c + 3, c + 2))
            F.append("v_permlane32_swap_b32 v%d, v%d" % (c + 2, c + 3))
            F.append("v_max_f32 v%d, v%d, v%d" % (c + 2, c + 2, c + 3))
            F.append("v_mov_b32 v%d, v%d" % (c + 3, c + 2))
            F.append("v_permlane16_swap_b32 v%d, v%d" % (c + 2, c + 3))
            F.append("v_max_f32 v%d, v%d, v%d" % (c + 2, c + 2, c + 3))
            F.append("v_sub_f32 v%d, v%d, v%d" % (c, c, c + 2))
            F.append("v_sub_f32 v%d, v%d, v%d" % (c + 1, c + 1, c + 2))
            F.append("v_mul_f32 v%d, v%d, v%d" % (c, c, p + 3))
            F.append("v_mul_f32 v%d, v%d, v%d" % (c + 1, c + 1, p + 3))
            F.append("v_exp_f32 v%d, v%d" % (c, c))
            F.append("v_exp_f32 v%d, v%d" % (c + 1, c + 1))
            F.append("v_cvt_pk_bf16_f32 v%d, v%d, v%d" % (c, c, c))
            F.append("v_cvt_pk_bf16_f32 v%d, v%d, v%d" % (c + 1, c + 1, c + 1))
            F.append("v_and_b32 v%d, v%d, v%d" % (P, M, c))
            F.append("v_and_b32 v%d, v%d, v%d" % (P + 1, M + 1, c + 1))
            F.append("v_and_b32 v%d, v%d, v%d" % (P + 2, M + 2, c))
            F.append("v_and_b32 v%d, v%d, v%d" % (P + 3, M + 3, c + 1))
            return F
        def pv(t):
            A("%s %s, %s, %s, 0" % (MF16, vr(K(t), 4), vr(ones, 4), vr(V(t), 4)))
            A("%s %s, %s, %s, 0" % (MF16, vr(Q(t), 4), vr(Vb(t - 1), 4), vr(V(t), 4)))
        def fin(t):
            A("v_rcp_f32 v%d, v%d" % (K(t), K(t)))
            for h in (0, 2): A("v_pk_mul_f32 %s, %s, %s op_sel:[0,0] op_sel_hi:[1,0]" % (P2(Q(t) + h), P2(Q(t) + h), P2(K(t))))
            for h in (0, 2): A("v_cvt_pk_bf16_f32 v%d, v%d, v%d" % (Qb(t) + h // 2, Q(t) + h, Q(t) + h + 1))
        def ost(p):
            r = Qb(2 * p)
            A("v_permlane16_swap_b32 v%d, v%d" % (r, r + 2)); A("v_permlane16_swap_b32 v%d, v%d" % (r + 1, r + 3))
            return self.stores(["buffer_store_dwordx4 %s, v%d, %s, s%d offen offset:%d" % (vr(r, 4), vL16, rWS, sA, p * 1024)])
        rdB(0, 88)
        for t in range(4):
            fixQ(t); fixK(t); self.bg(1)
            fixV(t, 88)
            rdB(t + 1 if t < 3 else -1, 88) if t < 3 else None
            if t >= 1: smm(t)
            self.bg(1)
        halo_ready()
        F = []
        s1, s2, s3 = soft(1), soft(2), soft(3)
        for a, b, c in zip(s1, s2, s3): F += [a, b, c]
        ht = {}
        def hrd(ks): ht[ks] = A.lg("ds_read_b128 %s, v%d offset:%d" % (vr(88 + 4 * (ks % 3), 4), vL16h, ks * 1024))
        hrd(0); hrd(1)
        for ks in range(16):
            A.wait(lg=ht[ks])
            b = vr(88 + 4 * (ks % 3), 4)
            A("%s %s, %s, %s, %s" % (MF16, vr(K(-1), 4), Xslot(3 * ks + 1), b, vr(K(-1), 4) if ks else '0'))
            if ks + 2 < 16: hrd(ks + 2)
            for _ in range(2):
                if F: A(F.pop(0))
            A("%s %s, %s, %s, %s" % (MF16, vr(V(-1), 4), b, Xslot(3 * ks + 2), vr(V(-1), 4) if ks else '0'))
            for _ in range(3):
                if F: A(F.pop(0))
            if layer == 2: self.push([('W12', 2 * ks), ('W12', 2 * ks + 1)])
            if ks % 2: self.bg(1)
        while F: A(F.pop(0))
        rdB(-1, 88)
        for t in (1, 2, 3): pv(t)
        fixK(-1); smm(0); self.bg(1)
        fixV(-1, 88)
        A("s_lshl_b32 s%d, s%d, 2\ns_add_u32 s%d, s%d, s%d\ns_lshl_b32 s%d, s%d, 11\ns_add_u32 s%d, s%d, s%d" % (sA, sJ, sA, sA, sW, sA, sA, sA, sA, sHB))
        fin(2); fin(3); ost(1)
        for f in soft(0): A(f)
        pv(0); fin(1); fin(0)
        return ost(0)
    def masks(self):
        return ["v_mov_b32 v11, 0xffff", "v_mov_b32 v12, 0xffff0000", "v_cndmask_b32 v11, v11, v12, %s" % sPAR,
                "v_cndmask_b32 v252, v11, 0, %s" % sSEL0, "v_cndmask_b32 v253, v11, 0, %s" % sSEL1,
                "v_cndmask_b32 v254, 0, v11, %s" % sSEL0, "v_cndmask_b32 v255, 0, v11, %s" % sSEL1]
    def ones(self, r): return ["v_mov_b32 v%d, 0x3f803f80" % (r + i) for i in range(4)]
    def cs_addr(self, which):
        return "v_mad_u32_u24 v13, s%d, v12, v%d" % (sW, vL16h), L_CS - 65536 + which * 12288
    def cs_park(self, which, r):
        A = self.A
        A("v_mov_b32 v12, 3072"); t, o = self.cs_addr(which); A(t)
        for u in range(3): A.lg("ds_write_b128 v13, %s offset:%d" % (vr(r + 4 * u, 4), o + u * 1024))
    def cs_fetch(self, which, r):
        t, o = self.cs_addr(which)
        return ["v_mov_b32 v12, 3072", t] + [('lg', "ds_read_b128 %s, v13 offset:%d" % (vr(r + 4 * u, 4), o + u * 1024)) for u in range(3)]
    def xdma_setup(self):
        A = self.A
        A("s_lshl_b32 s%d, s%d, 14\ns_add_u32 s%d, s%d, s%d" % (sHst, sW, sB, sXB, sHst))
        self.soff.pop(0, None); self.soff.pop('m0', None)
    def xdma(self, ks): return self.dma(rWS, vL16, sB, ks * 1024, sHst, ks * 1024)

    def build(self):
        A = self.A; self.cold = []
        stop = OPT['stop']
        A("s_cmp_ge_u32 s2, 256\ns_cbranch_scc1 L_end")
        self.stamp()
        A("s_load_dwordx2 s[8:9], s[0:1], 0\ns_load_dwordx2 s[12:13], s[0:1], 48\ns_load_dwordx2 s[16:17], s[0:1], 64")
        A("v_lshrrev_b32 v11, 6, v0\nv_and_b32 v0, 63, v0")
        A("v_readfirstlane_b32 s%d, v11" % sW)
        A("s_and_b32 s3, s2, 7\ns_lshl_b32 s3, s3, 2\ns_lshr_b32 s%d, s2, 6\ns_add_u32 s%d, s%d, s3" % (sT, sT, sT))
        A("s_bfe_u32 s%d, s2, 0x30003" % sJ)
        A("s_getreg_b32 s%d, hwreg(HW_REG_XCC_ID, 0, 4)" % sXCC)
        A("s_mov_b32 s10, 0x200000\ns_mov_b32 s11, 0x20000\ns_mov_b32 s14, 0x200000\ns_mov_b32 s15, 0x20000")
        A("s_mov_b32 s18, %d\ns_mov_b32 s19, 0x20000\ns_mov_b32 s22, %d\ns_mov_b32 s23, 0x20000" % (WS_SZ, 86 * 16384))
        A("s_mov_b32 s%d, 0x200000\ns_mov_b32 s%d, 0" % (sSPIN, sFAST))
        A("s_lshr_b32 s%d, s%d, 1\ns_and_b32 s%d, s%d, 1" % (sNH, sW, sKH, sW))
        A("v_lshlrev_b32 v%d, 4, v0" % vL16)
        A("v_and_b32 v11, 31, v0\nv_lshrrev_b32 v12, 5, v0\nv_lshlrev_b32 v13, 10, v11\nv_lshl_add_u32 v13, v12, 4, v13")
        A("s_lshl_b32 s{0}, s{1}, 1\ns_add_u32 s{0}, s{0}, s{2}\ns_lshl_b32 s{0}, s{0}, 15".format(sNAT, sT, sKH))
        A("s_lshl_b32 s{0}, s{1}, 1\ns_add_u32 s{0}, s{0}, s{2}".format(sA, sJ, sNH))
        A("s_lshl_b32 s3, s%d, 6\ns_add_u32 s%d, s%d, s3" % (sA, sNAT, sNAT))
        A("v_and_b32 v14, 15, v0\nv_lshrrev_b32 v10, 4, v0\nv_lshlrev_b32 v15, 10, v14\nv_lshl_add_u32 v15, v10, 4, v15")
        A("s_lshl_b32 s{0}, s{1}, 2\ns_add_u32 s{0}, s{0}, s{2}".format(sB, sJ, sW))
        A("s_lshl_b32 s3, s%d, 14" % sB)
        for s in range(3): A("s_add_u32 s%d, s3, %d" % (sWQ[s], WS_WQ + s * 32 * 16384))
        A("s_add_u32 s%d, s3, %d" % (sWO, WS_WO))
        A("s_mul_i32 s%d, s%d, %d\ns_add_u32 s%d, s%d, %d" % (sW2, sB, 43 * 1024, sW2, sW2, WS_W2))
        A("s_lshl_b32 s%d, s%d, 14" % (sHst, sW))
        A("s_lshl_b32 s3, s%d, 16\ns_add_u32 s%d, s3, s%d" % (sT, sXst, sHst))
        A("s_waitcnt lgkmcnt(0)")
        A("s_load_dwordx2 s[%d:%d], s[16:17], %d" % (sE, sE + 1, WS_E))
        t1 = A.vm("buffer_load_dwordx4 v[80:83], v13, %s, s%d offen" % (rX, sNAT))
        t1 = A.vm("buffer_load_dwordx4 v[84:87], v13, %s, s%d offen offset:32" % (rX, sNAT))
        xt = {}
        def x0dma(ks): xt[ks] = self.dma(rX, 15, sXst, ks * 64, sHst, ks * 1024, flags='')
        self.push([('WQ', n) for n in range(48)])
        for c in range(2):
            x0dma(2 * c); x0dma(2 * c + 1); self.bg(6)
        A("s_add_u32 s20, s16, %d\ns_addc_u32 s21, s17, 0" % WS_W1)
        A("v_add_u32 v%d, 0x10000, v%d" % (vL16h, vL16))
        A("s_mul_i32 s3, s%d, 3072\nv_add_u32 v%d, s3, v%d" % (sKH, vKeep, vL16))
        A("s_lshl_b32 s3, s%d, 10\ns_add_u32 s3, s3, 1024\nv_add_u32 v%d, s3, v%d" % (sKH, vSend, vL16))
        A("v_bfe_u32 v5, v0, 4, 1\nv_lshlrev_b32 v5, 14, v5\nv_lshl_add_u32 v5, v12, 8, v5\nv_lshl_add_u32 v5, v14, 4, v5")
        A("v_lshlrev_b32 v%d, 2, v11" % vFlag)
        A("v_lshlrev_b32 v7, 5, v11\nv_lshl_add_u32 v7, v12, 2, v7")
        A("v_lshlrev_b32 v8, 11, v10\nv_lshl_add_u32 v8, v14, 5, v8")
        A("v_lshlrev_b32 v9, 3, v14\nv_add_u32 v9, %d, v9" % L_ST)
        A("v_and_b32 v11, 1, v0\nv_cmp_eq_u32 %s, 1, v11" % sPAR)
        A("v_lshl_add_u32 v11, v10, 2, v11\nv_cmp_le_u32 %s, v11, v14" % sSEL0)
        A("v_add_u32 v11, 2, v11\nv_cmp_le_u32 %s, v11, v14" % sSEL1)
        A("v_lshlrev_b32 v10, 4, v10\nv_add_u32 v10, %d, v10" % L_SM)
        A("s_lshl_b32 s3, s%d, 16\ns_add_u32 s%d, s3, %d" % (sT, sXB, WS_XB))
        A("s_mul_i32 s3, s%d, %d\ns_add_u32 s%d, s3, %d" % (sT, HB_SZ, sHB, WS_HB))
        A("s_lshl_b32 s3, s%d, 7\ns_add_u32 s%d, s3, %d" % (sT, sFT, WS_FT))
        A("s_lshl_b32 s3, s%d, 2\ns_add_u32 s%d, s%d, s3" % (sB, sFTm, sFT))
        A("s_mul_i32 s3, s%d, 11\ns_mul_i32 s%d, s%d, 3\ns_add_u32 s3, s3, s%d\ns_lshl_b32 s%d, s3, 14" % (sJ, sW1[0], sW, sW1[0], sW1[0]))
        A("s_add_u32 s%d, s%d, 16384\ns_add_u32 s%d, s%d, 32768" % (sW1[1], sW1[0], sW1[2], sW1[0]))
        A("s_cmp_eq_u32 s%d, 3\ns_cselect_b32 s%d, %d, s%d" % (sW, sW1[2], OOB, sW1[2]))
        A("s_lshl_b32 s3, s%d, 13\ns_add_u32 s%d, s3, %d" % (sT, sSBc, WS_SB))
        A("s_lshr_b32 s3, s{0}, 2\ns_lshl_b32 s3, s3, 11\ns_add_u32 s{1}, s{2}, s3\ns_and_b32 s3, s{0}, 3\ns_lshl_b32 s3, s3, 3\ns_add_u32 s{1}, s{1}, s3".format(sA, sSBp, sSBc))
        A("s_lshl_b32 s3, s%d, 10\ns_add_u32 s%d, s%d, s3" % (sKH, sSBp, sSBp))
        A("s_max_u32 s3, s%d, 1\ns_sub_u32 s%d, s3, 1" % (sT, sTAG))
        A("s_lshl_b32 s3, s%d, 13\ns_add_u32 s%d, s3, %d" % (sTAG, sSBh, WS_SB + 3 * 512))
        A("s_lshl_b32 s3, s%d, 9\ns_add_u32 s%d, s%d, s3" % (sW, sSBc, sSBc))
        A("s_lshl_b32 s3, s%d, 14\ns_add_u32 s%d, s3, %d\ns_lshl_b32 s3, s%d, 12\ns_add_u32 s%d, s%d, s3" % (sTAG, sHXc, WS_HX, sW, sHXc, sHXc))
        A("s_lshl_b32 s3, s%d, 14\ns_add_u32 s%d, s3, %d\ns_lshl_b32 s3, s%d, 10\ns_add_u32 s%d, s%d, s3" % (sT, sHXp, WS_HX - 16384, sA, sHXp, sHXp))
        A("s_cmp_eq_u32 s%d, 0\ns_cselect_b32 s%d, %d, s%d" % (sKH, sHXp, OOB, sHXp))
        A("s_mov_b32 s3, 0x7f800000\ns_cmp_eq_u32 s%d, 0\ns_cselect_b32 s%d, %s, s3" % (sT, sLIM, fbits(-1e30)))
        A("s_lshl_b32 s3, s%d, 8\nv_mov_b32 v124, s3\ns_lshl_b32 s3, s%d, 8\nv_mov_b32 v125, s3" % (sT, sTAG))
        A("v_cmp_gt_u32 vcc, 32, v0\nv_cndmask_b32 v124, v125, v124, vcc\nv_lshl_add_u32 v124, v%d, 1, v124\nv_add_u32 v124, %d, v124" % (vFlag, WS_F0))
        for t in self.ones(248): A(t)
        A.wait(vm=t1)
        for i in range(8):
            A("v_lshlrev_b32 v%d, 16, v%d\nv_and_b32 v%d, 0xffff0000, v%d" % (vRes + 2 * i, 80 + i, vRes + 2 * i + 1, 80 + i))
        A("v_mov_b32 v125, v15")
        self.stats_make(); self.stats_store(0)
        A("v_mov_b32 v15, v125")
        self.park()
        A("v_mov_b32 v14, -1\nv_mov_b32 v80, -1\nv_mov_b32 v81, -1\nv_mov_b32 v82, -1\nv_mov_b32 v83, -1\nv_mov_b32 v12, 0")
        for u in (1, 2, 3): self.stats_store(u)
        self.soff.pop(1, None)
        A("s_mov_b32 exec_lo, 0xffff0000\ns_mov_b32 exec_hi, 0xffff0000")
        for h in range(2): A.vm("buffer_store_dwordx4 v[80:83], v%d, %s, s%d offen offset:%d sc1" % (vXst, rWS, sHXp, h * 512))
        A("s_mov_b64 exec, 1")
        tclr = A.vm("buffer_store_dword v12, v12, %s, s%d offen sc1" % (rWS, sFTm))
        A("s_mov_b64 exec, -1")
        A("s_waitcnt lgkmcnt(0)"); A.lg_done = A.lg_n
        A("s_mul_i32 s{0}, s{1}, 0x9E3779B1\ns_add_u32 s{0}, s{0}, 0x7F4A7C15\ns_and_b32 s{0}, s{0}, 0xfffffff0".format(sTAG, sE))
        A("s_add_u32 s%d, s%d, 0x85EBCA6B" % (sTAG + 1, sE + 1))
        self.stamp()
        st = {}
        F = []
        def f0_store():
            A.wait(vm=tclr)
            A("s_or_b32 s3, s%d, s%d\nv_mov_b32 v12, s3\nv_mov_b32 v13, s%d\nv_mov_b32 v11, 0" % (sTAG, sXCC, sTAG + 1))
            A("s_sub_u32 s3, s%d, %d\ns_lshl_b32 s3, s3, 1\ns_add_u32 s3, s3, %d" % (sFTm, WS_FT, WS_F0))
            A("s_mov_b64 exec, 1")
            A.vm("buffer_store_dwordx2 v[12:13], v11, %s, s3 offen sc1" % rWS)
            A("s_mov_b64 exec, -1")
        def f0_load(): st['f0'] = A.vm("buffer_load_dwordx2 v[126:127], v124, %s, 0 offen sc1" % rWS)
        def f0_check():
            A.wait(vm=st['f0'])
            chk = ["v_and_b32 v11, -16, v126", "v_xor_b32 v11, s%d, v11" % sTAG, "v_xor_b32 v12, s%d, v127" % (sTAG + 1), "v_or_b32 v11, v11, v12", "v_cmp_ne_u32 vcc, 0, v11"]
            l1, l2 = self.label('retry'), self.label('got')
            for c in chk: A(c)
            A("s_cbranch_vccnz %s\n%s:" % (l1, l2))
            self.cold.append("%s:\ns_sleep 2\nbuffer_load_dwordx2 v[126:127], v124, %s, 0 offen sc1" % (l1, rWS))
            self.cold.append("s_sub_u32 s%d, s%d, 1\ns_cbranch_scc1 L_end\ns_waitcnt vmcnt(0)" % (sSPIN, sSPIN))
            self.cold += chk
            self.cold.append("s_cbranch_vccnz %s\ns_branch %s" % (l1, l2))
            A("v_and_b32 v11, 15, v126\nv_cmp_ne_u32 vcc, s%d, v11" % sXCC)
            A("s_cmp_eq_u32 vcc_lo, 0\ns_cselect_b32 s%d, %d, 0" % (sFAST, 0 if OPT['force_slow'] else 1))
            st['s'] = self.stats_load(sSBc, 0, 108); st['h'] = self.stats_load(sSBh, 0, 116)
            A.vm("buffer_load_dword v125, v%d, %s, s%d offen sc1" % (vFlag, rWS, sFT))
        def halo0():
            A("s_lshl_b32 s3, s%d, 16\ns_sub_u32 s3, s3, 16384\ns_max_i32 s3, s3, 0\ns_lshl_b32 s%d, s%d, 8\ns_add_u32 s%d, s%d, s3" % (sT, sB, sW, sB, sB))
            A("s_lshl_b32 s%d, s%d, 12" % (sHst, sW))
            self.soff.pop('m0', None)
            for u in range(4): st['halo'] = self.dma(rX, 15, sB, u * 64, sHst, 65536 + u * 1024, flags='')
        def hook(ks, i):
            c = ks >> 1; n = (ks & 1) * 12 + i
            if c + 2 < 8:
                if n in (0, 3): x0dma(2 * (c + 2) + n // 3)
                elif n in (6, 9, 12, 15, 18, 21): self.bg(1)
            else:
                if ks == 12 and i == 0: halo0(); self.push([('WO1', k) for k in range(16)] + [('W11', k) for k in range(27)])
                elif n % 3 == 0: self.bg(1)
            if ks == 4 and i == 1: f0_store()
            if ks == 8 and i == 1: f0_load()
            if ks == 10 and i == 1: f0_check()
            if ks == 11 and i == 1: F.extend(self.masks())
            if ks == 13 and i == 1:
                A.wait(vm=st['h']); F.extend(self.stats_finish(108) + self.stats_finish(116, tile=4))
            for _ in range(2):
                if F: self.emit(F.pop(0))
        accq = lambda ct, tt: vAcc + 16 * ct + 4 * tt
        self.gemm1('WQ', Xslot, accq, lambda ct: ct == 2, (236, 248), {2 * c: c for c in range(8)}, lambda ks: xt[ks + 1], hook)
        while F: self.emit(F.pop(0))
        self.stamp()
        self.cs_park(0, 236)
        A.wait(vm=st['halo'], lg=A.lg_n); A("s_barrier")
        for layer in (1, 2):
            ph = 4 * (layer - 1)
            tok = self.attention(layer, lambda: None)
            self.stamp()
            self.publish(tok, ph + 1)
            if layer == 1: self.push([('W11', k) for k in range(43, 48)])
            self.bg(6)
            A("v_lshl_add_u32 v13, s%d, 12, v%d\nv_add_u32 v13, %d, v13" % (sW, vL16h, L_PARK - 65536))
            if stop == ph + 1: break
            self.poll(ph + 1)
            wk = 'WO%d' % layer
            def hook(i, h):
                if h == 0: self.push([('W11', 27 + i) if layer == 1 else ('W12', 32 + i)])
            rt = self.gemm2(16, wk, (lambda i: Yslot(27 + i)) if layer == 1 else (lambda i: Xslot(3 * i)), True, hook)
            self.q.sort(key=lambda k: k[1])
            self.bg(4)
            A("s_lshl_b32 s3, s{0}, 1\ns_add_u32 s3, s3, s{1}\ns_lshl_b32 s3, s3, 10\ns_lshl_b32 s{2}, s{3}, 15\ns_add_u32 s{2}, s{2}, s3\ns_add_u32 s{2}, s{2}, s{4}".format(sJ, sNH, sXst, sKH, sXB))
            for u in range(4):
                A.wait(lg=rt[u])
                for h in (0, 2): A("v_pk_add_f32 v[%d:%d], v[%d:%d], v[%d:%d]" % (vRes + 4 * u + h, vRes + 4 * u + h + 1, vAcc + 4 * u + h, vAcc + 4 * u + h + 1, 64 + 4 * u + h, 64 + 4 * u + h + 1))
            self.xpack()
            tok = self.stores(["buffer_store_dwordx4 %s, v%d, %s, s%d offen offset:%d" % (vr(80 + 4 * h, 4), vXst, rWS, sXst, h * 512) for h in range(2)])
            self.stamp()
            self.stats_make()
            self.publish(tok, ph + 2)
            self.bg(6)
            self.xdma_setup()
            if stop == ph + 2: break
            self.poll(ph + 2)
            xt = {}
            for ks in range(8): xt[ks] = self.xdma(ks)
            use = 2 * layer - 1
            F = []
            if layer == 1: F += self.ones(120)
            while F: self.emit(F.pop(0))
            def hook(ks, i):
                if ks < 2 and i % 3 == 0: xt[8 + 4 * ks + i // 3] = self.xdma(8 + 4 * ks + i // 3)
                if ks == 2 and i == 0: self.stats_store(use); self.soff.pop(1, None)
                if layer == 1 and i == 11: self.push([('W2', k) for k in range(3 * ks, min(3 * ks + 3, 43))])
                if ks >= 2 and i % 4 == 1: self.bg(1)
                if ks == 8 and i == 0: st['s'] = self.stats_load(sSBc, use, 80)
                if ks == 9 and i == 0 and layer == 2: F.extend(self.cs_fetch(1, 108))
                if ks == 12 and i == 0:
                    self.sentinel_check(st['s'], list(range(80, 88)),
                        ["s_add_u32 s3, s%d, %d" % (sSBc, use * 32 * 8192)] + ["buffer_load_dwordx4 %s, v%d, %s, s3 offen offset:%d sc1" % (vr(80 + 4 * h, 4), vSBc, rWS, 16 * h) for h in range(2)])
                    F.extend(self.stats_finish(80))
                if F: self.emit(F.pop(0))
            acc1 = lambda ct, tt: vAcc + 16 * ct + 4 * tt
            grp = {0: 1, 2: 3, 4: 7, 8: 15}
            self.gemm1('W11' if layer == 1 else 'W12', Yslot if layer == 1 else self.w12, acc1, lambda ct: False, (108, 120) if layer == 1 else None, grp, lambda ks: xt[grp[ks]], hook)
            while F: self.emit(F.pop(0))
            self.stamp()
            A.wait_all_lg(); A("s_barrier")
            tk = [A.lg("ds_read_b64 v[%d:%d], v%d offset:%d" % (80 + 2 * t, 81 + 2 * t, vStA, t * 128)) for t in range(4)]
            if layer == 1: self.cs_park(1, 108)
            for ct in range(3):
                A("s_lshr_b32 s3, s%d, 3\ns_add_u32 s%d, s3, s%d" % (sW1[ct], sA, sHB))
                for p in range(2):
                    r = 88 + 4 * ((2 * ct + p) % 5)
                    for tt in (2 * p, 2 * p + 1):
                        A.wait(lg=tk[tt])
                        a = acc1(ct, tt)
                        for h in (0, 2): A("v_pk_fma_f32 v[%d:%d], v[%d:%d], v[%d:%d], v[%d:%d] op_sel:[0,0,0] op_sel_hi:[1,0,1]" % (a + h, a + h + 1, 108 + 4 * ct + h, 109 + 4 * ct + h, 80 + 2 * tt, 81 + 2 * tt, a + h, a + h + 1))
                        for h in (0, 2): A("v_cvt_pk_bf16_f32 v%d, v%d, v%d" % (r + 2 * (tt & 1) + h // 2, a + h, a + h + 1))
                    for k in range(4): A("v_pk_max_i16 v%d, v%d, 0" % (r + k, r + k))
                    A("v_permlane16_swap_b32 v%d, v%d" % (r, r + 2)); A("v_permlane16_swap_b32 v%d, v%d" % (r + 1, r + 3))
                    tok = self.stores(["buffer_store_dwordx4 %s, v%d, %s, s%d offen offset:%d" % (vr(r, 4), vL16, rWS, sA, p * 1024)])
            self.stamp()
            self.publish(tok, ph + 3)
            self.bg(6)
            if stop == ph + 3: break
            self.poll(ph + 3)
            def hook(i, h):
                if h == 0: self.bg(1)
                if i == 40 and h == 0:
                    A("v_lshl_add_u32 v11, s%d, 7, v%d\nv_add_u32 v11, %d, v11" % (sKH, vFlag, L_SR))
                    st['r'] = A.lg("ds_read_b32 v14, v11")
            rt = self.gemm2(43, 'W2' if layer == 1 else None, Yslot, False, hook)
            for u in range(4):
                A.wait(lg=rt[u])
                for h in (0, 2):
                    a = vAcc + 4 * u + h
                    A("v_pk_add_f32 v[%d:%d], v[%d:%d], v[%d:%d]" % (a, a + 1, a, a + 1, 64 + 4 * u + h, 64 + 4 * u + h + 1))
                for h in (0, 2):
                    a = vAcc + 4 * u + h; r = vRes + 4 * u + h
                    A("v_pk_fma_f32 v[%d:%d], v[%d:%d], v[14:15], v[%d:%d] op_sel:[0,0,0] op_sel_hi:[1,0,1]" % (r, r + 1, a, a + 1, r, r + 1))
            self.xpack()
            if layer == 2:
                A("v_lshlrev_b32 v13, 8, v%d\nv_lshrrev_b32 v12, 9, v%d\nv_lshl_add_u32 v13, v12, 4, v13" % (vFlag, vL16))
                for h in range(2): A.vm("buffer_store_dwordx4 %s, v13, %s, s%d offen offset:%d" % (vr(80 + 4 * h, 4), rOUT, sNAT, h * 32))
                self.stamp()
                break
            tok = self.stores(["buffer_store_dwordx4 %s, v%d, %s, s%d offen offset:%d" % (vr(80 + 4 * h, 4), vXst, rWS, sXst, h * 512) for h in range(2)])
            self.stamp()
            self.stats_make()
            self.publish(tok, ph + 4)
            self.park()
            self.xdma_setup()
            if stop == ph + 4: break
            self.poll(ph + 4)
            xt = {}
            for ks in range(8): xt[ks] = self.xdma(ks)
            F = []
            hl = ["buffer_load_dwordx4 %s, v%d, %s, s%d offen offset:%d sc1" % (vr(16 + 4 * u, 4), vL16, rWS, sHXc, u * 1024) for u in range(4)]
            def hook(ks, i):
                if ks < 2 and i % 3 == 0: xt[8 + 4 * ks + i // 3] = self.xdma(8 + 4 * ks + i // 3)
                if ks == 2 and i == 0:
                    self.stats_store(2); self.soff.pop(1, None)
                    A("s_mov_b32 exec_lo, 0xffff0000\ns_mov_b32 exec_hi, 0xffff0000")
                    for h in range(2): A.vm("buffer_store_dwordx4 %s, v%d, %s, s%d offen offset:%d sc1" % (vr(80 + 4 * h, 4), vXst, rWS, sHXp, h * 512))
                    A("s_mov_b64 exec, -1\ns_nop 3")
                if i == 11: self.push([('WO2', ks)])
                if ks >= 2 and i % 6 == 1: self.bg(1)
                if ks == 3 and i == 0: F.extend(self.cs_fetch(0, 236) + self.ones(248) + self.masks())
                if ks == 8 and i == 0:
                    st['s'] = self.stats_load(sSBc, 2, 108); st['h'] = self.stats_load(sSBh, 2, 116)
                    for t in hl: st['hx'] = A.vm(t)
                if ks == 12 and i == 0:
                    rl = []
                    for sb, r in ((sSBc, 108), (sSBh, 116)):
                        rl += ["s_add_u32 s3, s%d, %d" % (sb, 2 * 32 * 8192)] + ["buffer_load_dwordx4 %s, v%d, %s, s3 offen offset:%d sc1" % (vr(r + 4 * h, 4), vSBc, rWS, 16 * h) for h in range(2)]
                    self.sentinel_check(st['hx'], list(range(108, 124)) + list(range(16, 32)), rl + hl)
                    F.append("v_lshl_add_u32 v13, s%d, 12, v%d" % (sW, vL16h))
                    F.extend([('lg', "ds_write_b128 v13, %s offset:%d" % (vr(16 + 4 * u, 4), u * 1024)) for u in range(4)])
                    F.extend(self.stats_finish(108) + self.stats_finish(116, tile=4))
                for _ in range(2 if ks >= 12 else 1):
                    if F: self.emit(F.pop(0))
            grp = {0: 1, 2: 3, 4: 7, 8: 15}
            self.gemm1(None, Xslot, accq, lambda ct: ct == 2, None, grp, lambda ks: xt[grp[ks]], hook)
            while F: self.emit(F.pop(0))
            self.stamp()
            A.wait_all_lg(); A("s_barrier")
        A("s_or_b32 s3, s2, s%d\ns_cmp_lg_u32 s3, 0\ns_cbranch_scc1 L_noE" % sW)
        A("v_mov_b32 v12, s%d\nv_mov_b32 v13, s%d\nv_mov_b32 v11, 0\ns_mov_b64 exec, 1" % (sTAG, sTAG + 1))
        A("buffer_store_dwordx2 v[12:13], v11, %s, 0 offen sc1\ns_mov_b64 exec, -1" % rWS)
        A("L_noE:")
        if OPT['prof']:
            A("s_waitcnt vmcnt(0)\ns_memtime s[100:101]\ns_waitcnt lgkmcnt(0)")
            A("s_lshl_b32 s3, s2, 2\ns_add_u32 s3, s3, s%d\ns_lshl_b32 s3, s3, 7\ns_add_u32 s3, s3, %d\nv_mov_b32 v11, 0" % (sW, WS_PROF))
            for i in range(19):
                A("v_mov_b32 v12, s%d" % (sST0 + 2 * i))
                A("buffer_store_dword v12, v11, %s, s3 offen offset:%d" % (rWS, 4 * i))
            A("v_mov_b32 v12, s%d\nbuffer_store_dword v12, v11, %s, s3 offen offset:124" % (sFAST, rWS))
        if OPT['ea'] >= 0:
            A("s_waitcnt vmcnt(0)\ns_memrealtime s[68:69]\ns_waitcnt lgkmcnt(0)\ns_sub_u32 s3, s66, s64\ns_min_u32 s3, s3, 20000")
            A("L_echo:\ns_memrealtime s[70:71]\ns_waitcnt lgkmcnt(0)\ns_sub_u32 s70, s70, s68\ns_cmp_lt_u32 s70, s3\ns_cbranch_scc1 L_echo")
        A("L_end:\ns_endpgm")
        for c in self.cold: A(c)
        return A.L

def header():
    src = open(os.path.join(os.path.dirname(os.path.abspath(__file__)), "..", "cdna_kernels", NAME + ".s.ref")).read()
    return [l for l in src.split('\n') if l.startswith(';') and '@launch' not in l and 'Override' not in l and 'grid=' not in l]

if __name__ == "__main__":
    out = header()
    out.append("; @launch kernel=pre_kernel grid=(302,1,1) block=(256,1,1) lds=16384")
    out.append("; @launch kernel=main_kernel grid=(256,1,1) block=(256,1,1) lds=%d" % LDS_BYTES)
    out.append('.amdgcn_target "amdgcn-amd-amdhsa--gfx950"\n.text')
    for name, lines, nv, ao in (("pre_kernel", gen_pre(), 32, 32), ("main_kernel", Main().build(), 512, 256)):
        lines, added = pad_hazards(lines)
        sys.stderr.write("%s: %d lines, %d pad states\n" % (name, len(lines), added))
        out.append(".globl %s\n.p2align 8\n.type %s,@function\n%s:" % (name, name, name))
        out += ["    " + l if not l.endswith(':') else l for l in lines]
        out.append(KDESC % (name, nv, ao))
    open(sys.argv[1], "w").write("\n".join(out) + "\n")
```

```python
import sys, os, struct
sys.path.insert(0, os.path.dirname(os.path.abspath(__file__)))
from asmlib import *

NAME = "interleave_layers__sliding_local_dilated__dense_activation_relu__prompt"
OPT = dict(prof=0, stop=99, force_slow=0, ea=-1, eb=-1, fine=0, p0=0,
           pp_pos=0, f0st=4, f0ld=8, att_bg=20, ack_bg=6, poll_bg=4, first_sc1=1, ctouch=1, wtouch=1)
for a in sys.argv[2:]:
    k, v = a.split('='); assert k in OPT, k; OPT[k] = int(v)

WS_E, WS_F0 = 0, 0x1000
WS_TM = 0x10000; TM_SZ = 0xD000
TM_HX, TM_FT = 0x8000, 0xC000
WS_XB = 0x200000
WS_HB = 0x400000
HB_SZ = 176 * 1024
WS_WO, WS_W1, WS_W2 = 0xA00000, 0xA80000, 0xC00000
WS_PROF = 0xF00000
WS_SZ = 0x1000000
OOB = 0x08000000
L_A = 0
L_WST = 81920
L_RED = 81920
L_PARK = 98304
L_CS = 131072
L_ST = 155648
L_SM = L_ST + 1024
L_SR = L_ST + 1536
LDS_BYTES = 157696

sT, sJ, sW, sFAST = 4, 5, 6, 7
rX, rWQ, rOUT, rWS, rPP, rW1 = 's[8:11]', 's[12:15]', 's[12:15]', 's[16:19]', 's[20:23]', 's[20:23]'
sNH, sKH = 24, 25
sOUT = 26; sWQs = 28; sWO = 29; sW1 = [30, 31, 32]; sW2 = 33
sXB, sHB, sSBp, sSBc, sSBh, sFT, sFTm, sNAT = 34, 35, 36, 37, 38, 39, 40, 41
sHXp, sHXc, sHst, sLIM, sSPIN, sXst = 42, 43, 44, 45, 46, 47
sPAR, sSEL0, sSEL1 = 's[48:49]', 's[50:51]', 's[52:53]'
sTMP = [54, 55, 56]
sA, sB = 57, 58
sXCC = 59
sE, sTAG = 60, 62
sST0 = 64
KA = 80
vL16, vL16h, vKeep, vSend, vXst, vFlag, vSBp, vSBc, vStA, vStB = range(1, 11)
vXs0, vXs1, vWs, vWr, vA0, vA1 = range(26, 32)
vRes = 16
vAcc = 32
vAf = 88
def Yslot(n): return vr(192 + 4 * n, 4, 'a') if n < 16 else vr(128 + 4 * (n - 16), 4, 'v')
def Xslot(n): return vr(4 * n, 4, 'a')
MF16 = 'v_mfma_f32_16x16x32_bf16'
MF32 = 'v_mfma_f32_32x32x16_bf16'
CEXP = 0.25 * 1.4426950408889634
def fbits(x): return '0x%08x' % struct.unpack('<I', struct.pack('<f', x))[0]
P2 = lambda r: "v[%d:%d]" % (r, r + 1)
LO = "op_sel:[0,0,0] op_sel_hi:[1,0,1]"

class Main:
    def __init__(self, slow):
        self.A = Asm(); self.soff = {}; self.nst = 0; self.lbl = 0
        self.q = []; self.tok = {}; self.names = []; self.slow = slow; self.cold = []; self.pfx = 'S' if slow else 'F'
    def stamp(self, name='', lvl=0):
        if lvl > OPT['fine']: return
        k = self.nst - OPT['p0']
        if OPT['prof'] and 0 <= k < 18:
            self.A("s_memtime s[%d:%d]" % (sST0 + 2 * k, sST0 + 2 * k + 1)); self.names.append(name)
        if OPT['ea'] == self.nst: self.A("s_memrealtime s[64:65]")
        if OPT['eb'] == self.nst: self.A("s_memrealtime s[66:67]")
        self.nst += 1
    def label(self, p):
        self.lbl += 1; return "L%s_%s_%d" % (self.pfx, p, self.lbl)
    def so(self, sbase, off, slot):
        hi = off & ~4095
        if hi == 0: return sbase, off
        if self.soff.get(slot) != (sbase, hi):
            self.A("s_add_u32 s%d, s%d, %d" % (sTMP[slot], sbase, hi)); self.soff[slot] = (sbase, hi)
        return sTMP[slot], off & 4095
    def wload(self, key):
        kind, n = key
        if kind == 'WO1': dst, srd, sb, off, sl = Yslot(27 + n), rWS, sWO, n * 1024, 1
        elif kind == 'WO2': dst, srd, sb, off, sl = Xslot(3 * n), rWS, sWO, n * 1024, 1
        elif kind == 'W11': dst, srd, sb, off, sl = Yslot(n), rW1, sW1[n % 3], (n // 3) * 1024, n % 3
        elif kind == 'W12': dst, srd, sb, off, sl = self.w12(n), rW1, sW1[n % 3], (n // 3) * 1024, n % 3
        elif kind == 'W2': dst, srd, sb, off, sl = Yslot(n), rWS, sW2, n * 1024, 1
        s, imm = self.so(sb, off, sl)
        self.tok[key] = self.A.vm("buffer_load_dwordx4 %s, v%d, %s, s%d offen offset:%d" % (dst, vL16, srd, s, imm))
    def w12(self, n): return Xslot(3 * (n >> 1) + 1 + (n & 1)) if n < 32 else Xslot(3 * (n - 32))
    def push(self, keys): self.q += list(keys)
    def bg(self, n=1):
        for _ in range(n):
            if self.q: self.wload(self.q.pop(0))
    def need(self, key):
        while key not in self.tok:
            assert self.q, key
            self.wload(self.q.pop(0))
        self.A.wait(vm=self.tok[key])
    def store(self, text, first=False):
        return self.A.vm(text + (" sc1" if (self.slow or (first and OPT['first_sc1'])) else ""))
    def publish(self, tok, phase):
        A = self.A
        A("v_mov_b32 v11, %d\nv_mov_b32 v12, 0\ns_mov_b64 exec, 1" % phase)
        A.wait(vm=tok, lg=A.lg_n)
        self.store("buffer_store_dword v11, v12, %s, s%d offen" % (rWS, sFTm))
        A("s_mov_b64 exec, -1")
        self.stamp('ack', 1)
    def poll(self, phase):
        A = self.A
        l = self.label('poll')
        A("%s:" % l)
        A.vm("buffer_load_dword v11, v%d, %s, s%d offen sc1" % (vFlag, rWS, sFT))
        A("s_sub_u32 s%d, s%d, 1\ns_cbranch_scc1 L_end" % (sSPIN, sSPIN))
        A.wait_all_vm()
        A("v_cmp_gt_i32 vcc, %d, v11\ns_cbranch_vccnz %s" % (phase, l))
        self.stamp('polled', 1)
    def dma(self, srd, voff, sbase, off, ldsbase_s, ldsoff, flags='sc1'):
        A = self.A
        s, imm = self.so(sbase, off, 0)
        m = (ldsbase_s, ldsoff - imm)
        if self.soff.get('m0') != m:
            A("s_add_u32 m0, s%d, %d" % (ldsbase_s, (ldsoff - imm) & 0xffffffff)); self.soff['m0'] = m
        return A.vm("buffer_load_dwordx4 v%d, %s, s%d offen offset:%d %s lds" % (voff, srd, s, imm, flags))
    def retry(self, chk, reload_lines):
        A = self.A
        l1, l2 = self.label('retry'), self.label('got')
        for c in chk: A(c)
        A("s_cbranch_vccnz %s\n%s:" % (l1, l2))
        self.cold.append("%s:\ns_sleep 1" % l1)
        self.cold += reload_lines
        self.cold.append("s_sub_u32 s%d, s%d, 1\ns_cbranch_scc1 L_end\ns_waitcnt vmcnt(0)" % (sSPIN, sSPIN))
        self.cold += chk
        self.cold.append("s_cbranch_vccnz %s\ns_branch %s" % (l1, l2))
    def stats_make(self, r=vRes):
        A = self.A
        A("v_pk_add_f32 v[12:13], %s, %s" % (P2(r), P2(r + 2)))
        A("v_pk_mul_f32 v[14:15], %s, %s" % (P2(r), P2(r)))
        for i in range(1, 8):
            if i > 1: A("v_pk_add_f32 v[12:13], v[12:13], %s" % P2(r + 2 * i))
            A("v_pk_fma_f32 v[14:15], %s, %s, v[14:15]" % (P2(r + 2 * i), P2(r + 2 * i)))
        A("v_add_f32 v12, v12, v13\nv_add_f32 v14, v14, v15")
        A("v_permlane32_swap_b32 v12, v14")
        A("v_add_f32 v14, v12, v14")
    def stats_store(self, use):
        self.A("s_add_u32 s3, s%d, %d" % (sSBp, use * 8192))
        return self.A.vm("buffer_store_dword v14, v%d, %s, s3 offen sc1" % (vSBp, rWS))
    def stats_lines(self, sbase, use, dst):
        return ["s_add_u32 s3, s%d, %d" % (sbase, use * 8192)] + ["buffer_load_dwordx4 %s, v%d, %s, s3 offen offset:%d sc1" % (vr(dst + 4 * h, 4), vSBc, rWS, 16 * h) for h in range(2)]
    def run_lines(self, lines):
        t = None
        for l in lines:
            if l.startswith('buffer_'): t = self.A.vm(l)
            else: self.A(l)
        return t
    def sentinel(self, regs):
        chk = ["v_max3_u32 v11, v%d, v%d, v%d" % tuple(regs[:3])]
        rest = regs[3:]
        while len(rest) >= 2:
            chk.append("v_max3_u32 v11, v11, v%d, v%d" % (rest[0], rest[1])); rest = rest[2:]
        if rest: chk.append("v_max_u32 v11, v11, v%d" % rest[0])
        chk.append("v_cmp_eq_u32 vcc, -1, v11")
        return chk
    def stats_finish(self, r, tile=None):
        F = []
        for a, b, c in ((0, 2, 4), (1, 3, 5)): F.append("v_add_f32 v%d, v%d, v%d" % (r + a, r + a, r + b))
        for a, b, c in ((4, 6, 0), (5, 7, 0)): F.append("v_add_f32 v%d, v%d, v%d" % (r + a, r + a, r + b))
        for a in (0, 1): F.append("v_add_f32 v%d, v%d, v%d" % (r + a, r + a, r + a + 4))
        if tile is None: F.append("v_lshl_add_u32 v%d, s%d, 7, v%d" % (r + 2, sW, vStA))
        else: F.append("v_add_u32 v%d, %d, v%d" % (r + 2, tile * 128, vStA))
        F.append("v_lshrrev_b32 v%d, 1, v%d" % (r + 3, r + 2))
        F.append("v_permlane32_swap_b32 v%d, v%d" % (r, r + 1))
        F.append("v_add_f32 v%d, v%d, v%d" % (r, r, r + 1))
        F.append("v_mov_b32 v%d, v%d" % (r + 1, r))
        F.append("v_add_u32 v%d, %d, v%d" % (r + 3, L_SM - L_ST // 2, r + 3))
        F.append("v_permlane16_swap_b32 v%d, v%d" % (r, r + 1))
        F.append("v_add_f32 v%d, v%d, v%d" % (r, r, r + 1))
        F.append("v_mov_b32 v%d, v%d" % (r + 1, r))
        F.append("v_permlane32_swap_b32 v%d, v%d" % (r, r + 1))
        F.append("v_mul_f32 v%d, %s, v%d" % (r, fbits(-1.0 / 512), r))
        F.append("v_mul_f32 v%d, %s, v%d" % (r + 1, fbits(1.0 / 512), r + 1))
        F.append("v_fma_f32 v%d, -v%d, v%d, v%d" % (r + 1, r, r, r + 1))
        F.append("v_max_f32 v%d, 0, v%d" % (r + 1, r + 1))
        F.append("v_add_f32 v%d, %s, v%d" % (r + 1, fbits(1e-5), r + 1))
        F.append("v_rsq_f32 v%d, v%d" % (r + 1, r + 1))
        F.append(('lg', "ds_write_b64 v%d, %s" % (r + 2, P2(r))))
        F.append(('lg', "ds_write2_b32 v%d, v%d, v%d offset0:0 offset1:128" % (r + 3, r, r + 1)))
        return F
    def emit(self, f):
        if callable(f): return f()
        if isinstance(f, tuple): return self.A.lg(f[1]) if f[0] == 'lg' else self.A.vm(f[1])
        self.A(f)
    def fill(self, F, budget):
        while F and budget > 0:
            f = F[0]
            c = 2 if (isinstance(f, str) and (f.startswith('v_permlane') or f.split()[0] in TRANS)) else 1
            if c > budget and budget < 2: break
            self.emit(F.pop(0)); budget -= c
    def zipf(self, *ls):
        out = []
        for i in range(max(map(len, ls))):
            for l in ls:
                if i < len(l): out.append(l[i])
        return out
    def gemm1(self, passes, wneed, wreg, acc, swap, cs, addr, gate, hook, F):
        A = self.A; NB = 5
        seq = [(p, ks, tt) for p, tl in enumerate(passes) for ks in range(16) for tt in tl]
        rtok = {}
        def rd(f):
            p, ks, tt = seq[f]
            if tt == passes[p][0]: gate(p, ks)
            v, o = addr(ks, tt)
            rtok[f] = A.lg("ds_read_b128 %s, v%d offset:%d" % (vr(vAf + 4 * (f % NB), 4), v, o))
        for f in range(4): rd(f)
        A.wait(lg=rtok[0])
        for f, (p, ks, tt) in enumerate(seq):
            tl = passes[p]; ti = tl.index(tt)
            if ti == 0 and (ks * len(tl)) % 16 == 0: self.stamp('p%dk%d' % (p, ks), 1)
            for ct in range(3):
                if ti == 0 and p == 0 and wneed: wneed(ks, ct)
                a, b = wreg(3 * ks + ct), vr(vAf + 4 * (f % NB), 4)
                if swap(ct): a, b = b, a
                d = vr(acc(ct, tt), 4)
                A("%s %s, %s, %s, %s" % (MF16, d, a, b, d if ks else '0'))
                n0 = len(A.L)
                if ct == 0 and f + 4 < len(seq): rd(f + 4)
                if ct == 2 and f + 1 < len(seq): A.wait(lg=rtok[f + 1])
                hook(p, ks, 3 * ti + ct)
                self.fill(F, 1 if ct == 0 else max(0, min(2, 3 - (len(A.L) - n0))))
            if cs is not None and p == 0:
                for c in ([ti] if len(tl) == 4 else [[0, 1], [2]][ti]):
                    if c > 2: continue
                    a, b = wreg(3 * ks + c), vr(cs[1], 4)
                    if swap(c): a, b = b, a
                    d = vr(cs[0] + 4 * c, 4)
                    A("%s %s, %s, %s, %s" % (MF16, d, a, b, d if ks else '0'))
                    self.fill(F, 2)
    def gemm2_setup(self):
        A = self.A
        A("s_lshl_b32 s%d, s%d, 11" % (sHst, sW))
        A("s_add_u32 s%d, s%d, s%d" % (sA, sHB, sHst))
        A("s_cmp_ge_u32 s%d, 2\ns_cselect_b32 s%d, %d, s%d" % (sW, sB, OOB, sA))
        A("v_lshl_add_u32 v12, s%d, 12, v%d" % (sW, vL16h))
        A("v_xor_b32 v13, 0x1000, v12")
        self.soff.pop(0, None); self.soff.pop('m0', None)
    def gemm2(self, ns, wkey, wreg, init_keep, hook):
        A = self.A
        nc = (ns + 1) // 2; D = 5
        dtok = {}
        def dma1(c, u):
            sb = sB if (ns & 1 and c == nc - 1) else sA
            dtok[c] = self.dma(rWS, vL16, sb, c * 8192 + u * 1024, sHst, (c & 7) * 8192 + u * 1024)
        reg = lambda i, h: 64 + (i & 3) * 8 + h * 4
        rtok = {}
        def rd(i, h): rtok[(i, h)] = A.lg("ds_read_b128 %s, v%d offset:%d" % (vr(reg(i, h), 4), vSend if h else vKeep, (i & 15) * 4096))
        for c in range(2):
            for u in range(2): dma1(c, u)
        A.wait(vm=dtok[0]); A("s_barrier")
        self.stamp('g2first')
        rd(0, 1); rd(0, 0); rd(1, 1); rd(1, 0)
        for c in range(2, D):
            for u in range(2): dma1(c, u)
        for c in range(nc):
            steps = list(range(2 * c, min(2 * c + 2, ns)))
            nxt = list(range(2 * c + 2, min(2 * c + 4, ns)))
            order = [(i, h) for i in steps for h in (1, 0)]
            pend = [(i, h) for i in nxt for h in (1, 0)]
            if c == nc - 1: order.sort(key=lambda x: -x[1])
            if c == nc - 2: pend.sort(key=lambda x: -x[1])
            pd = [0, 1] if c + D < nc else []
            for n, (i, h) in enumerate(order):
                if h == 1 and wkey: self.need((wkey, i))
                A.wait(lg=rtok[(i, h)])
                d = vr(vAcc + 16 * h, 16)
                cin = d if (i or (h == 0 and init_keep)) else '0'
                A("%s %s, %s, %s, %s" % (MF32, d, wreg(i), vr(reg(i, h), 4), cin))
                if n == 1 and nxt:
                    A.wait(vm=dtok[c + 1]); A("s_barrier")
                if n >= 1:
                    for _ in range(2):
                        if pend: rd(*pend.pop(0))
                if n in (0, 3) and pd: dma1(c + D, pd.pop(0))
                hook(i, h)
            assert not pend and not pd
        self.stamp('g2mfma', 1)
        for u in range(4): A.lg("ds_write_b128 v12, %s offset:%d" % (vr(vAcc + 16 + 4 * u, 4), L_RED - 65536 + u * 1024))
        A.wait_all_lg(); A("s_barrier")
        for u in range(4): rtok[u] = A.lg("ds_read_b128 %s, v13 offset:%d" % (vr(64 + 4 * u, 4), L_RED - 65536 + u * 1024))
        return rtok
    def park(self):
        A = self.A
        A("v_lshl_add_u32 v13, s%d, 12, v%d" % (sW, vL16h))
        for u in range(4): A.lg("ds_write_b128 v13, %s offset:%d" % (vr(vRes + 4 * u, 4), L_PARK - 65536 + u * 1024))
    def att_pre(self):
        A = self.A; self.atk = tk = {}
        F = []
        def r(t): tk['A', t] = A.lg("ds_read_b64 %s, v%d offset:%d" % (P2(16 + 2 * t), vStA, t * 128))
        def rb(t, reg):
            A.lg("ds_read_b128 %s, v%d offset:%d" % (vr(reg, 4), vStB, t * 64))
            tk['B', t] = A.lg("ds_read_b128 %s, v%d offset:%d" % (vr(reg + 4, 4), vStB, t * 64 + 512))
        for t in range(5): F.append(lambda t=t: r(t))
        F.append(lambda: rb(0, 80))
        self.rb = rb
        return F
    def attention(self, layer):
        A = self.A; tk = self.atk; rdB = self.rb
        Q = lambda t: vAcc + 4 * t; K = lambda t: (vAcc + 16 + 4 * t) if t >= 0 else vAcc + 48; V = lambda t: (vAcc + 32 + 4 * t) if t >= 0 else vAcc + 52
        Qb = lambda t: 100 + 2 * t; Kb = lambda t: 110 + 2 * t; Vb = lambda t: 120 + 2 * t
        tb = lambda t: t if t >= 0 else 4
        SA = lambda t: 16 + 2 * tb(t)
        csQ, csK, csV, ones, M = 236, 240, 244, 248, 252
        nb = [0]
        def bgtick(n):
            nb[0] += n
            while nb[0] >= OPT['att_bg']: nb[0] -= OPT['att_bg']; self.bg(1)
        def fixQ(t):
            A.wait(lg=tk['A', tb(t)])
            for h in (0, 2): A("v_pk_fma_f32 %s, %s, %s, %s %s" % (P2(Q(t) + h), P2(csQ + h), P2(SA(t)), P2(Q(t) + h), LO))
            for h in (0, 2): A("v_cvt_pk_bf16_f32 v%d, v%d, v%d" % (Qb(t) + h // 2, Q(t) + h, Q(t) + h + 1))
            bgtick(4)
        def fixK(t):
            A.wait(lg=tk['A', tb(t)])
            for h in (0, 2): A("v_pk_fma_f32 %s, %s, %s, %s %s" % (P2(K(t) + h), P2(csK + h), P2(SA(t)), P2(K(t) + h), LO))
            for h in (0, 2): A("v_pk_mul_f32 %s, %s, %s op_sel:[0,1] op_sel_hi:[1,1]" % (P2(K(t) + h), P2(K(t) + h), P2(SA(t))))
            for h in (0, 2): A("v_cvt_pk_bf16_f32 v%d, v%d, v%d" % (Kb(t) + h // 2, K(t) + h, K(t) + h + 1))
            bgtick(6)
        def fixV(t, r):
            A.wait(lg=tk['B', tb(t)])
            for h in (0, 2): A("v_pk_fma_f32 %s, %s, %s, %s %s" % (P2(V(t) + h), P2(r + h), P2(csV), P2(V(t) + h), LO))
            for h in (0, 2): A("v_pk_mul_f32 %s, %s, %s" % (P2(V(t) + h), P2(V(t) + h), P2(r + 4 + h)))
            for h in (0, 2): A("v_cvt_pk_bf16_f32 v%d, v%d, v%d" % (Vb(t) + h // 2, V(t) + h, V(t) + h + 1))
            bgtick(6)
        smc = lambda t: "v_mfma_f32_16x16x16_bf16 %s, %s, %s, 0" % (vr(Q(t), 4), P2(Kb(t)), P2(Qb(t)))
        smp = lambda t: "v_mfma_f32_16x16x16_bf16 %s, %s, %s, 0" % (vr(K(t), 4), P2(Kb(t - 1)), P2(Qb(t)))
        def soft_c(t):
            c = Q(t)
            return ["v_cndmask_b32 v%d, v%d, v%d, %s" % (c, c, c + 1, sPAR), "v_cndmask_b32 v%d, v%d, v%d, %s" % (c + 1, c + 2, c + 3, sPAR),
                    "v_mul_f32 v%d, %s, v%d" % (SA(t), fbits(CEXP), SA(t) + 1)]
        def soft(t):
            c, p, P = Q(t), K(t), V(t)
            F = []
            F.append("v_cndmask_b32 v%d, v%d, v%d, %s" % (p, p, p + 1, sPAR))
            F.append("v_cndmask_b32 v%d, v%d, v%d, %s" % (p + 1, p + 2, p + 3, sPAR))
            if t == 0:
                F.append("v_min_f32 v%d, s%d, v%d" % (p, sLIM, p)); F.append("v_min_f32 v%d, s%d, v%d" % (p + 1, sLIM, p + 1))
            F.append("v_cndmask_b32 v%d, v%d, v%d, %s" % (c, p, c, sSEL0))
            F.append("v_cndmask_b32 v%d, v%d, v%d, %s" % (c + 1, p + 1, c + 1, sSEL1))
            F.append("v_max_f32 v%d, v%d, v%d" % (c + 2, c, c + 1))
            F.append("v_max_f32 v%d, v%d, v%d" % (c + 3, c, c + 1))
            F.append("v_permlane32_swap_b32 v%d, v%d" % (c + 2, c + 3))
            F.append("v_max_f32 v%d, v%d, v%d" % (p, c + 2, c + 3))
            F.append("v_max_f32 v%d, v%d, v%d" % (p + 1, c + 2, c + 3))
            F.append("v_permlane16_swap_b32 v%d, v%d" % (p, p + 1))
            F.append("v_max_f32 v%d, v%d, v%d" % (p, p, p + 1))
            F.append("v_mul_f32 v%d, v%d, v%d" % (p, p, SA(t)))
            F.append("v_fma_f32 v%d, v%d, v%d, -v%d" % (c, c, SA(t), p))
            F.append("v_fma_f32 v%d, v%d, v%d, -v%d" % (c + 1, c + 1, SA(t), p))
            F.append("v_exp_f32 v%d, v%d" % (c, c))
            F.append("v_exp_f32 v%d, v%d" % (c + 1, c + 1))
            F.append("v_cvt_pk_bf16_f32 v%d, v%d, v%d" % (c, c, c))
            F.append("v_cvt_pk_bf16_f32 v%d, v%d, v%d" % (c + 1, c + 1, c + 1))
            F.append("v_and_b32 v%d, v%d, v%d" % (P, M, c))
            F.append("v_and_b32 v%d, v%d, v%d" % (P + 2, M + 2, c))
            F.append("v_and_b32 v%d, v%d, v%d" % (P + 1, M + 1, c + 1))
            F.append("v_and_b32 v%d, v%d, v%d" % (P + 3, M + 3, c + 1))
            return F
        pvl = lambda t: "%s %s, %s, %s, 0" % (MF16, vr(K(t), 4), vr(ones, 4), vr(V(t), 4))
        pvo = lambda t: "%s %s, %s, %s, 0" % (MF16, vr(Q(t), 4), vr(Vb(t - 1), 4), vr(V(t), 4))
        def fin(t):
            return ["v_rcp_f32 v%d, v%d" % (K(t), K(t))] + ["v_mul_f32 v%d, v%d, v%d" % (Q(t) + h, Q(t) + h, K(t)) for h in range(4)] + \
                   ["v_cvt_pk_bf16_f32 v%d, v%d, v%d" % (Qb(t) + h // 2, Q(t) + h, Q(t) + h + 1) for h in (0, 2)]
        def swp(p):
            r = Qb(2 * p); return ["v_permlane16_swap_b32 v%d, v%d" % (r, r + 2), "v_permlane16_swap_b32 v%d, v%d" % (r + 1, r + 3)]
        def ost(p): return self.store("buffer_store_dwordx4 %s, v%d, %s, s%d offen offset:%d" % (vr(Qb(2 * p), 4), vL16, rWS, sA, p * 1024), first=(layer == 1))
        rdB(1, 88)
        fixQ(0); fixK(0); fixV(0, 80); rdB(2, 80)
        fixQ(1); fixK(1); fixV(1, 88); rdB(3, 88)
        ht = {}
        def hrd(ks):
            v, o = (vL16h, ks * 1024) if layer == 2 else (vA1 if ks & 1 else vA0, (ks >> 1) * 2048)
            ht[ks] = A.lg("ds_read_b128 %s, v%d offset:%d" % (vr(88 + 4 * ((ks + 2) % 3), 4), v, o))
        fixQ(2); fixK(2); fixV(2, 80)
        if layer == 1: A("v_add_u32 v%d, 0x10000, v%d\nv_add_u32 v%d, 0x10000, v%d" % (vA0, vA0, vA1, vA1))
        hrd(0)
        fixQ(3); fixK(3); fixV(3, 88)
        hrd(1)
        self.stamp('fix', 1)
        for t in (1, 2, 3, 0): A(smc(t))
        for t in (1, 2, 3): A(smp(t))
        F = self.zipf(soft_c(1), soft_c(2), soft_c(3), soft_c(0)) + self.zipf(soft(1), soft(2), soft(3))
        A.wait(lg=ht[0])
        for ks in range(16):
            b = vr(88 + 4 * ((ks + 2) % 3), 4)
            A("%s %s, %s, %s, %s" % (MF16, vr(K(-1), 4), Xslot(3 * ks + 1), b, vr(K(-1), 4) if ks else '0'))
            if ks + 2 < 16: hrd(ks + 2)
            elif ks == 15: rdB(4, 88)
            self.fill(F, 2)
            A("%s %s, %s, %s, %s" % (MF16, vr(V(-1), 4), b, Xslot(3 * ks + 2), vr(V(-1), 4) if ks else '0'))
            if ks < 15: A.wait(lg=ht[ks + 1])
            if layer == 2: self.push([('W12', 2 * ks), ('W12', 2 * ks + 1)])
            bgtick(10)
            self.fill(F, 3)
        while F: A(F.pop(0))
        self.stamp('halo', 1)
        fixK(-1)
        A(smp(0))
        A("s_lshl_b32 s%d, s%d, 2\ns_add_u32 s%d, s%d, s%d" % (sA, sJ, sA, sA, sW))
        A(pvl(2)); A("s_lshl_b32 s%d, s%d, 11" % (sA, sA))
        A(pvl(3)); A("s_add_u32 s%d, s%d, s%d" % (sA, sA, sHB))
        F = soft(0)
        for m in (pvo(2), pvo(3), pvl(1), pvo(1)):
            A(m); A("s_nop 0"); self.fill(F, 2)
        A.wait(lg=tk['B', 4])
        G = ["v_fma_f32 v%d, v%d, v%d, v%d" % (V(-1) + h, 88 + h, csV, V(-1) + h) for h in range(4)] + ["v_mul_f32 v%d, v%d, v%d" % (V(-1) + h, V(-1) + h, 92 + h) for h in range(4)] + \
            ["v_cvt_pk_bf16_f32 v%d, v%d, v%d" % (Vb(-1) + h // 2, V(-1) + h, V(-1) + h + 1) for h in (0, 2)]
        for f in self.zipf(G, F): A(f)
        A(pvl(0)); A(pvo(0))
        for f in self.zipf(fin(2), fin(3)) + fin(1)[:2] + swp(1): A(f)
        ost(1)
        for f in self.zipf(fin(0), fin(1)[2:]) + swp(0): A(f)
        return ost(0)
    def masks(self):
        return ["v_mov_b32 v11, 0xffff", "v_mov_b32 v12, 0xffff0000", "v_cndmask_b32 v11, v11, v12, %s" % sPAR,
                "v_cndmask_b32 v252, v11, 0, %s" % sSEL0, "v_cndmask_b32 v253, v11, 0, %s" % sSEL1,
                "v_cndmask_b32 v254, 0, v11, %s" % sSEL0, "v_cndmask_b32 v255, 0, v11, %s" % sSEL1]
    def ones(self, r): return ["v_mov_b32 v%d, 0x3f803f80" % (r + i) for i in range(4)]
    def cs_io(self, which, r, op):
        o = which * 12288
        F = ["s_mul_i32 s3, s%d, 3072" % sW, "s_add_u32 s3, s3, %d" % L_CS, "v_add_u32 v13, s3, v%d" % vL16]
        for u in range(3):
            F.append(('lg', ("ds_write_b128 v13, %s offset:%d" if op == 'w' else "ds_read_b128 %s, v13 offset:%d") % (vr(r + 4 * u, 4), o + u * 1024)))
        return F

    def prologue(self):
        A = self.A
        A("s_cmp_ge_u32 s2, 256\ns_cbranch_scc1 L_end")
        self.stamp('start')
        A("s_load_dwordx16 s[%d:%d], s[0:1], 0\ns_load_dwordx2 s[16:17], s[0:1], 64" % (KA, KA + 15))
        A("v_lshrrev_b32 v11, 6, v0\nv_and_b32 v0, 63, v0")
        A("v_readfirstlane_b32 s%d, v11" % sW)
        if OPT['ctouch'] and OPT['stop'] == 99:
            A("s_getpc_b64 s[8:9]\ns_lshr_b32 s3, s2, 3\ns_lshl_b32 s3, s3, 2\ns_add_u32 s3, s3, s%d\ns_mul_i32 s3, s3, 384" % sW)
            A("v_lshl_add_u32 v12, v0, 7, s3\ns_mov_b64 exec, 7")
            A.vm("global_load_dword v126, v12, s[8:9]")
            A("s_mov_b64 exec, -1")
        A("s_and_b32 s3, s2, 7\ns_lshl_b32 s3, s3, 2\ns_lshr_b32 s%d, s2, 6\ns_add_u32 s%d, s%d, s3" % (sT, sT, sT))
        A("s_bfe_u32 s%d, s2, 0x30003" % sJ)
        A("s_mov_b32 s10, 0x200000\ns_mov_b32 s11, 0x20000\ns_mov_b32 s14, %d\ns_mov_b32 s15, 0x20000" % (512 * 3072))
        A("s_mov_b32 s18, %d\ns_mov_b32 s19, 0x20000\ns_mov_b32 s23, 0x20000" % WS_SZ)
        A("s_lshr_b32 s%d, s%d, 1\ns_and_b32 s%d, s%d, 1" % (sNH, sW, sKH, sW))
        A("v_lshlrev_b32 v%d, 4, v0" % vL16)
        A("v_lshrrev_b32 v10, 4, v0\nv_and_b32 v14, 15, v0\nv_lshrrev_b32 v15, 3, v0\nv_and_b32 v9, 7, v0")
        A("v_xor_b32 v11, v9, v10\nv_lshlrev_b32 v11, 4, v11\nv_lshl_add_u32 v%d, v15, 10, v11" % vXs0)
        A("v_xor_b32 v{0}, 64, v{1}\nv_add_u32 v{0}, 0x2000, v{0}".format(vXs1, vXs0))
        A("s_lshl_b32 s%d, s%d, 14" % (sHst, sW))
        A("s_lshl_b32 s3, s%d, 16\ns_add_u32 s%d, s3, s%d" % (sT, sXst, sHst))
        A("s_lshl_b32 s3, s%d, 7\ns_add_u32 s%d, s%d, s3" % (sJ, sA, sXst))
        A("s_lshl_b32 s3, s%d, 11\ns_add_u32 s%d, s%d, s3" % (sJ, sB, sHst))
        A("s_lshl_b32 s{0}, s2, 2\ns_add_u32 s{0}, s{0}, s{1}".format(sTAG, sW))
        A("s_mul_i32 s3, s%d, 1536\nv_lshl_add_u32 v12, v0, 7, s3" % sTAG)
        A("s_waitcnt lgkmcnt(0)")
        A("s_mov_b32 s8, s%d\ns_mov_b32 s9, s%d\ns_mov_b32 s12, s%d\ns_mov_b32 s13, s%d" % (KA, KA + 1, KA + 2, KA + 3))
        A("s_mov_b32 m0, s%d" % sB)
        A("s_load_dwordx2 s[%d:%d], s[16:17], %d" % (sE, sE + 1, WS_E))
        A.vm("buffer_load_dwordx4 v%d, %s, s%d offen lds" % (vXs0, rX, sA))
        A("s_add_u32 m0, s%d, 1024" % sB)
        self.txo = A.vm("buffer_load_dwordx4 v%d, %s, s%d offen lds" % (vXs1, rX, sA))
        if OPT['wtouch']:
            A("s_mov_b64 exec, 0xfff")
            A.vm("buffer_load_dword v126, v12, %s, 0 offen" % rWQ)
            A("s_mov_b64 exec, -1")
        A("s_cmp_lt_u32 s%d, 480" % sTAG)
        A("s_cselect_b32 s20, s%d, s%d\ns_cselect_b32 s21, s%d, s%d" % (KA + 4, KA + 10, KA + 5, KA + 11))
        A("s_mov_b32 s3, %d\ns_cselect_b32 s22, %d, s3" % (1376 * 1024, 512 * 1024))
        A("s_mov_b32 s3, %d\ns_cselect_b32 s97, %d, s3" % (WS_W2, WS_WO))
        A("s_mov_b32 s3, %d\ns_cselect_b32 s98, 16384, s3" % (43 * 1024))
        A("s_movk_i32 s3, 480\ns_cselect_b32 s3, 352, s3\ns_sub_u32 s3, s%d, s3" % sTAG)
        A("s_lshr_b32 s99, s3, 3\ns_and_b32 s100, s3, 7")
        A("s_and_b32 s%d, s%d, 15\ns_lshr_b32 s%d, s%d, 4" % (sA, sTAG, sB, sTAG))
        A("s_cmp_lt_u32 s%d, 352" % sTAG)
        A("s_cselect_b32 s20, s%d, s20\ns_cselect_b32 s21, s%d, s21\ns_cselect_b32 s22, %d, s22" % (KA + 8, KA + 9, 512 * 2752))
        A("s_cselect_b32 s97, %d, s97\ns_cselect_b32 s99, s%d, s99\ns_cselect_b32 s100, s%d, s100" % (WS_W1, sA, sB))
        A("s_movk_i32 s3, 1024\ns_cselect_b32 s96, 2752, s3\ns_movk_i32 s3, 2048\ns_cselect_b32 s101, 32, s3")
        A("s_cselect_b64 vcc, -1, 0")
        A("v_mul_lo_u32 v13, v15, s96\nv_lshl_add_u32 v13, v9, 4, v13")
        A("s_mul_i32 s3, s99, s96\ns_lshl_b32 s3, s3, 5\ns_lshl_b32 s%d, s100, 7\ns_add_u32 s3, s3, s%d" % (sA, sA))
        A("v_add_u32 v24, s3, v13")
        A("s_lshl_b32 s96, s96, 3")
        A("v_add_u32 v25, s96, v24\nv_add_u32 v22, s96, v25\nv_add_u32 v23, s96, v22")
        A("s_lshl_b32 s%d, s%d, 12\ns_add_u32 s%d, s%d, 0x10000" % (sB, sW, sB, sB))
        def pp_load():
            for n, v in enumerate((24, 25, 22, 23)):
                A("s_add_u32 m0, s%d, %d" % (sB, n * 1024))
                self.tpp = A.vm("buffer_load_dwordx4 v%d, %s, 0 offen lds" % (v, rPP))
            A("s_add_u32 s20, s16, %d\ns_addc_u32 s21, s17, 0\ns_mov_b32 s22, %d" % (WS_W1, 86 * 16384))
            self.soff.pop('m0', None)
        if OPT['pp_pos'] == 0: pp_load()
        A("v_and_b32 v11, 3, v0\nv_lshlrev_b32 v11, 3, v11\nv_lshl_add_u32 v11, v10, 10, v11")
        A("v_lshrrev_b32 v12, 5, v0\nv_lshlrev_b32 v13, 10, v12\nv_and_b32 v20, 1, v10\nv_lshl_add_u32 v13, v20, 5, v13")
        A("v_and_b32 v20, 1, v0\nv_lshl_add_u32 v13, v20, 4, v13\nv_bfe_u32 v20, v0, 1, 1\nv_lshl_add_u32 v13, v20, 3, v13")
        A("v_cndmask_b32 v13, v13, v11, vcc\nv_bfe_u32 v11, v0, 2, 2\nv_lshl_add_u32 v13, v11, 7, v13")
        A("v_add_u32 v20, s%d, v13\nv_add_u32 v21, s101, v20" % sB)
        A("s_mul_i32 s3, s100, s98\ns_lshl_b32 s3, s3, 2\ns_add_u32 s97, s97, s3\ns_lshl_b32 s3, s99, 10\ns_add_u32 s97, s97, s3")
        A("s_cmp_lt_u32 s%d, 824\ns_cselect_b32 s97, s97, %d" % (sTAG, OOB))
        A("s_lshl_b32 s99, s98, 1\ns_add_u32 s99, s99, s97\ns_cmp_eq_u32 s100, 21\ns_cselect_b32 s99, %d, s99" % OOB)
        A("v_and_b32 v11, 1, v10\ns_lshl_b32 s3, s%d, 1\nv_or_b32 v11, s3, v11\nv_lshlrev_b32 v11, 1, v11\nv_xor_b32 v11, v11, v9" % sKH)
        A("v_mul_u32_u24 v{0}, 3072, v15\nv_lshl_add_u32 v{0}, v11, 4, v{0}".format(vWs))
        A("s_mul_i32 s{0}, s{1}, {2}\ns_lshl_b32 s3, s{3}, 7\ns_add_u32 s{0}, s{0}, s3".format(sWQs, sW, 8 * 3072, sJ))
        A("s_mul_i32 s%d, s%d, 3072" % (sLIM, sW))
        A("s_mov_b32 s%d, s%d\ns_mov_b32 s%d, s%d" % (sOUT, KA + 12, sOUT + 1, KA + 13))
        A("s_mul_i32 s3, s%d, %d\ns_add_u32 s%d, s3, %d" % (sT, TM_SZ, sSBc, WS_TM))
        A("s_lshl_b32 s{0}, s{1}, 2\ns_add_u32 s{0}, s{0}, s{2}".format(sFTm, sJ, sW))
        A("s_mul_i32 s3, s%d, 1344\ns_add_u32 s3, s3, s%d\ns_add_u32 s3, s3, 8192" % (sFTm, sSBc))
        A("v_mov_b32 v16, -1\nv_mov_b32 v17, -1\nv_mov_b32 v18, -1\nv_mov_b32 v19, -1")
        A.vm("buffer_store_dwordx4 v[16:19], v%d, %s, s3 offen sc1" % (vL16, rWS))
        A("s_mov_b64 exec, 0xfffff")
        A.vm("buffer_store_dwordx4 v[16:19], v%d, %s, s3 offen offset:1024 sc1" % (vL16, rWS))
        A("s_mov_b64 exec, -1")
        A("s_lshl_b32 s3, s%d, 14\ns_add_u32 s%d, s3, %d" % (sFTm, sWO, WS_WO))
        A("s_mul_i32 s%d, s%d, %d\ns_add_u32 s%d, s%d, %d" % (sW2, sFTm, 43 * 1024, sW2, sW2, WS_W2))
        A("s_add_u32 s%d, s%d, %d\ns_lshl_b32 s3, s%d, 2\ns_add_u32 s%d, s%d, s3" % (sFT, sSBc, TM_FT, sFTm, sFTm, sFT))
        A("s_getreg_b32 s%d, hwreg(HW_REG_XCC_ID, 0, 4)" % sXCC)
        A("s_mov_b32 s%d, 0x200000\ns_mov_b32 s%d, 0" % (sSPIN, sFAST))
        A("v_bfe_u32 v11, v0, 3, 2\nv_lshlrev_b32 v11, 1, v11\nv_bfe_u32 v13, v0, 1, 1\ns_lshl_b32 s3, s%d, 1\nv_or_b32 v13, s3, v13\nv_xor_b32 v11, v11, v13" % sW)
        A("v_mul_u32_u24 v{0}, 3072, v10\nv_lshl_add_u32 v{0}, v11, 4, v{0}\nv_bfe_u32 v11, v0, 2, 2\nv_lshl_add_u32 v{0}, v11, 7, v{0}".format(vWr))
        A("v_and_b32 v11, 1, v0\nv_lshl_add_u32 v{0}, v11, 3, v{0}\nv_add_u32 v{0}, {1}, v{0}".format(vWr, L_WST))
        A("v_lshrrev_b32 v13, 1, v14\nv_xor_b32 v11, v13, v10\nv_lshlrev_b32 v11, 4, v11\nv_lshl_add_u32 v%d, v14, 7, v11\nv_xor_b32 v%d, 64, v%d" % (vA0, vA1, vA0))
        A("s_lshl_b32 s3, s%d, 2\nv_or_b32 v11, s3, v12\nv_xor_b32 v11, v11, v13\nv_lshlrev_b32 v11, 4, v11\nv_lshl_add_u32 v11, v14, 7, v11" % sNH)
        A("v_and_b32 v13, 1, v10\nv_lshl_add_u32 v11, v13, 14, v11\ns_lshl_b32 s3, s%d, 15\ns_lshl_b32 s%d, s%d, 11\ns_add_u32 s3, s3, s%d\nv_add_u32 v15, s3, v11" % (sKH, sA, sJ, sA))
        A("v_add_u32 v%d, 0x10000, v%d" % (vL16h, vL16))
        A("s_mul_i32 s3, s%d, 3072\nv_add_u32 v%d, s3, v%d" % (sKH, vKeep, vL16))
        A("s_lshl_b32 s3, s%d, 10\ns_add_u32 s3, s3, 1024\nv_add_u32 v%d, s3, v%d" % (sKH, vSend, vL16))
        A("v_lshlrev_b32 v5, 14, v13\nv_lshl_add_u32 v5, v12, 8, v5\nv_lshl_add_u32 v5, v14, 4, v5")
        A("v_and_b32 v11, 31, v0\nv_lshlrev_b32 v%d, 2, v11" % vFlag)
        A("v_lshlrev_b32 v7, 5, v11\nv_lshl_add_u32 v7, v12, 2, v7")
        A("v_lshlrev_b32 v8, 11, v10\nv_lshl_add_u32 v8, v14, 5, v8")
        A("v_lshlrev_b32 v9, 3, v14\nv_add_u32 v9, %d, v9" % L_ST)
        A("v_and_b32 v11, 1, v0\nv_cmp_eq_u32 %s, 1, v11" % sPAR)
        A("v_lshl_add_u32 v11, v10, 2, v11\nv_cmp_le_u32 %s, v11, v14" % sSEL0)
        A("v_add_u32 v11, 2, v11\nv_cmp_le_u32 %s, v11, v14" % sSEL1)
        A("v_lshlrev_b32 v10, 4, v10\nv_add_u32 v10, %d, v10" % L_SM)
        A("s_lshl_b32 s3, s%d, 16\ns_add_u32 s%d, s3, %d" % (sT, sXB, WS_XB))
        A("s_mul_i32 s3, s%d, %d\ns_add_u32 s%d, s3, %d" % (sT, HB_SZ, sHB, WS_HB))
        A("s_mul_i32 s3, s%d, 11\ns_mul_i32 s%d, s%d, 3\ns_add_u32 s3, s3, s%d\ns_lshl_b32 s%d, s3, 14" % (sJ, sW1[0], sW, sW1[0], sW1[0]))
        A("s_add_u32 s%d, s%d, 16384\ns_add_u32 s%d, s%d, 32768" % (sW1[1], sW1[0], sW1[2], sW1[0]))
        A("s_cmp_eq_u32 s%d, 3\ns_cselect_b32 s%d, %d, s%d" % (sW, sW1[2], OOB, sW1[2]))
        A("s_lshl_b32 s{0}, s{1}, 1\ns_add_u32 s{0}, s{0}, s{2}".format(sA, sJ, sNH))
        A("s_lshl_b32 s{0}, s{1}, 1\ns_add_u32 s{0}, s{0}, s{2}\ns_lshl_b32 s{0}, s{0}, 15\ns_lshl_b32 s3, s{3}, 6\ns_add_u32 s{0}, s{0}, s3".format(sNAT, sT, sKH, sA))
        A("s_lshr_b32 s3, s{0}, 2\ns_lshl_b32 s3, s3, 11\ns_add_u32 s{1}, s{2}, s3\ns_and_b32 s3, s{0}, 3\ns_lshl_b32 s3, s3, 3\ns_add_u32 s{1}, s{1}, s3".format(sA, sSBp, sSBc))
        A("s_lshl_b32 s3, s%d, 10\ns_add_u32 s%d, s%d, s3" % (sKH, sSBp, sSBp))
        A("s_lshl_b32 s3, s%d, 10\ns_add_u32 s%d, s%d, s3\ns_add_u32 s%d, s%d, %d" % (sA, sHXp, sSBc, sHXp, sHXp, TM_HX - 16384))
        A("s_cmp_eq_u32 s%d, 0\ns_cselect_b32 s%d, %d, s%d" % (sKH, sHXp, OOB, sHXp))
        A("s_cmp_eq_u32 s%d, 0\ns_cselect_b32 s3, 0, %d\ns_sub_u32 s%d, s%d, s3" % (sT, TM_SZ, sSBh, sSBc))
        A("s_lshl_b32 s3, s%d, 12\ns_add_u32 s%d, s%d, s3\ns_add_u32 s%d, s%d, %d" % (sW, sHXc, sSBh, sHXc, sHXc, TM_HX))
        A("s_add_u32 s%d, s%d, %d" % (sSBh, sSBh, 3 * 512))
        A("s_lshl_b32 s3, s%d, 9\ns_add_u32 s%d, s%d, s3" % (sW, sSBc, sSBc))
        for t in self.ones(248) + self.masks(): A(t)
        self.pp_load = pp_load

    def qkv1(self):
        A = self.A; st = self.st = {}
        wt = {}; xt = {}
        def wdma(ks):
            A("s_add_u32 s%d, s%d, %d\ns_add_u32 m0, s%d, %d" % (sA, sWQs, ks * 32 * 3072, sLIM, L_WST + (ks % 6) * 12288))
            return [lambda s=s: wt.__setitem__(ks, A.vm("buffer_load_dwordx4 v%d, %s, s%d offen offset:%d lds" % (vWs, rWQ, sA, s * 1024))) for s in range(3)]
        def xdma(n):
            A("s_cmp_le_u32 s%d, %d\ns_cselect_b32 s3, %d, %d\ns_lshl_b32 s%d, s3, 11\ns_add_u32 m0, s%d, s%d" % (sJ, n, n + 1, n, sTMP[0], sTMP[0], sHst))
            A("s_lshl_b32 s3, s3, 7\ns_add_u32 s%d, s3, s%d" % (sTMP[0], sXst))
            A.vm("buffer_load_dwordx4 v%d, %s, s%d offen lds" % (vXs0, rX, sTMP[0]))
            A("s_add_u32 m0, m0, 1024")
            xt[n] = A.vm("buffer_load_dwordx4 v%d, %s, s%d offen lds" % (vXs1, rX, sTMP[0]))
        def W(ks):
            for f in wdma(ks): f()
        W(0); xdma(0); W(1)
        self.stamp('iss0', 1)
        A.wait(vm=self.txo); A("s_barrier")
        A("v_xor_b32 v11, 32, v15")
        A.lg("ds_read_b128 v[80:83], v15"); A.lg("ds_read_b128 v[84:87], v11")
        if OPT['pp_pos'] == 1: self.pp_load()
        W(2); xdma(1)
        A("s_waitcnt lgkmcnt(0)"); A.lg_done = A.lg_n
        for i in range(8): A("v_lshlrev_b32 v%d, 16, v%d\nv_and_b32 v%d, 0xffff0000, v%d" % (48 + 2 * i, 80 + i, 49 + 2 * i, 80 + i))
        A("v_mov_b32 v0, v15")
        self.stats_make(48); self.stats_store(0)
        A("s_mul_i32 s{0}, s{1}, 0x9E3779B1\ns_add_u32 s{0}, s{0}, 0x7F4A7C15\ns_and_b32 s{0}, s{0}, 0xfffffff0".format(sTAG, sE))
        A("s_add_u32 s%d, s%d, 0x85EBCA6B" % (sTAG + 1, sE + 1))
        W(3)
        def pp_do():
            A.wait(vm=self.tpp)
            for f in range(4):
                for hh in range(2): t = A.lg("ds_read_b64_tr_b16 %s, v%d offset:%d" % (P2(108 + f * 4 + hh * 2), 20 + (f & 1), (f >> 1) * 64 + hh * 512))
            A("s_add_u32 s100, s97, s98\ns_add_u32 s101, s99, s98")
            A.wait(lg=t)
            for f, s in enumerate((97, 100, 99, 101)): st['pp'] = A.vm("buffer_store_dwordx4 %s, v%d, %s, s%d offen sc1" % (vr(108 + 4 * f, 4), vL16, rWS, s))
        if OPT['pp_pos'] == 0: pp_do()
        W(4); xdma(2)
        self.stamp('prolog')
        F = []; S = []; tr = {}
        def f0_store():
            A("s_or_b32 s3, s%d, s%d\nv_mov_b32 v12, s3\nv_mov_b32 v13, s%d\nv_mov_b32 v11, 0" % (sTAG, sXCC, sTAG + 1))
            A("s_lshl_b32 s3, s%d, 3\ns_add_u32 s3, s3, s%d\ns_lshl_b32 s3, s3, 3\ns_add_u32 s3, s3, %d" % (sT, sJ, WS_F0))
            A("s_cmp_eq_u32 s%d, 0\ns_cselect_b32 s3, s3, %d\ns_mov_b64 exec, 1" % (sW, OOB))
            A.vm("buffer_store_dwordx2 v[12:13], v11, %s, s3 offen sc1" % rWS)
            A("s_mov_b64 exec, -1")
        f0l = ["s_movk_i32 s3, %d" % WS_F0] + ["buffer_load_dwordx4 %s, v%d, %s, s3 offen offset:%d sc1" % (vr(108 + 4 * h, 4), vL16, rWS, 1024 * h) for h in range(2)]
        def f0_check():
            A.wait(vm=st['f0'])
            chk = []
            for k in range(4): chk += ["v_and_b32 v11, -16, v%d" % (108 + 2 * k), "v_xor_b32 v11, s%d, v11" % sTAG, "v_xor_b32 v13, s%d, v%d" % (sTAG + 1, 109 + 2 * k), ("v_or3_b32 v12, v11, v13, v12" if k else "v_or_b32 v12, v11, v13")]
            chk.append("v_cmp_ne_u32 vcc, 0, v12")
            self.retry(chk, f0l)
            A("s_cmp_lt_u32 s%d, 16\ns_cselect_b64 vcc, -1, 0" % sT)
            A("v_cndmask_b32 v11, v112, v108, vcc\nv_cndmask_b32 v12, v114, v110, vcc")
            A("v_xor_b32 v11, s%d, v11\nv_xor_b32 v12, s%d, v12\nv_or_b32 v11, v11, v12\nv_and_b32 v11, 15, v11\nv_cmp_ne_u32 vcc, 0, v11" % (sXCC, sXCC))
            A("s_and_b32 s3, s%d, 15\ns_lshl_b32 s3, s3, 2\ns_lshr_b64 vcc, vcc, s3\ns_and_b32 s3, vcc_lo, 15" % sT)
            A("s_cselect_b32 s%d, 0, %d" % (sFAST, 0 if OPT['force_slow'] else 1))
            self.run_lines(self.stats_lines(sSBc, 0, 108)); st['h'] = self.run_lines(self.stats_lines(sSBh, 0, 116))
            A.vm("buffer_load_dword v125, v%d, %s, s%d offen sc1" % (vFlag, rWS, sFT))
            self.push([('WO1', k) for k in range(16)] + [('W11', k) for k in range(27)])
        def halo0(c):
            A("s_lshl_b32 s3, s%d, 16\ns_sub_u32 s3, s3, 16384\ns_max_i32 s3, s3, 0\ns_lshl_b32 s%d, s%d, 8\ns_add_u32 s%d, s%d, s3" % (sT, sTMP[0], sW, sTMP[0], sTMP[0]))
            A("s_add_u32 m0, s%d, %d" % (sB, c * 2048 - c * 128))
            A.vm("buffer_load_dwordx4 v%d, %s, s%d offen offset:%d lds" % (vXs0, rX, sTMP[0], c * 128))
            A("s_add_u32 m0, m0, 1024")
            st['halo'] = A.vm("buffer_load_dwordx4 v%d, %s, s%d offen offset:%d lds" % (vXs1, rX, sTMP[0], c * 128))
        def trd(ks, s, hh): tr[ks] = A.lg("ds_read_b64_tr_b16 %s, v%d offset:%d" % (vr(4 * (3 * ks + s) + 2 * hh, 2, 'a'), vWr, (ks % 6) * 12288 + s * 1024 + hh * 512))
        def gate(p, ks):
            need = wt[ks]
            if ks % 2 == 0: need = max(need, xt[min(ks // 2, 6)])
            if ks == OPT['f0st']: need = max(need, st['pp'])
            if ks == 15: need = max(need, st['halo'])
            A.wait(vm=need, lg=(A.lg_n if ks == 15 else tr.get(ks - 1))); A("s_barrier")
            S.extend([lambda s=s, hh=hh: trd(ks, s, hh) for s in range(3) for hh in range(2)])
            if ks == 0:
                while S: S.pop(0)()
            if ks + 5 < 16: S.append(('W', ks + 5))
            if ks % 2 == 1 and 3 + ks // 2 < 7: S.append(lambda: xdma(3 + ks // 2))
            if ks in (9, 10): S.append(lambda: halo0(ks - 9))
            if ks == OPT['f0st']: S.append(f0_store)
            if ks == 15: S.extend(self.att_pre())
        def side():
            if not S: return False
            f = S.pop(0)
            if isinstance(f, tuple):
                l = wdma(f[1]); l[0](); S[0:0] = l[1:]
            else: f()
            return True
        def hook(p, ks, i):
            if OPT['pp_pos'] == 1 and ks == 1 and i == 11: pp_do()
            if ks == OPT['f0ld'] and i == 11: st['f0'] = self.run_lines(f0l)
            if ks == OPT['f0ld'] + 2 and i == 11: f0_check()
            if ks == 12 and i == 11:
                A.wait(vm=st['h']); F.extend(self.zipf(self.stats_finish(108), self.stats_finish(116, tile=4)))
            if ks == 13 and i == 11:
                while F: self.emit(F.pop(0))
            did = side()
            if i == 11:
                while side(): pass
            if not did and ks >= 10 and i % 2 == 1: self.bg(1)
        def wneed(ks, ct):
            if ct == 0: A.wait(lg=tr[ks])
        self.accq = lambda ct, tt: vAcc + 16 * ct + 4 * tt
        self.gemm1([[0, 1, 2, 3]], wneed, Xslot, self.accq, lambda ct: ct == 2, (236, 248), lambda ks, tt: (vA1 if ks & 1 else vA0, tt * 16384 + (ks >> 1) * 2048), gate, hook, F)
        A("s_mov_b32 s3, 0x7f800000\ns_cmp_eq_u32 s%d, 0\ns_cselect_b32 s%d, %s, s3" % (sT, sLIM, fbits(-1e30)))
        A("s_mov_b32 s12, s%d\ns_mov_b32 s13, s%d\ns_mov_b32 s14, 0x200000" % (sOUT, sOUT + 1))
        self.soff.clear()
        self.stamp('qkv1')

    def xdma_setup(self, split):
        A = self.A
        if split: A("s_lshl_b32 s3, s%d, 14\ns_lshl_b32 s%d, s%d, 10\ns_add_u32 s%d, s%d, s3" % (sKH, sHst, sNH, sHst, sHst))
        else: A("s_lshl_b32 s%d, s%d, 14" % (sHst, sW))
        A("s_add_u32 s%d, s%d, s%d" % (sB, sXB, sHst))
        self.soff.pop(0, None); self.soff.pop('m0', None)

    def rest(self):
        A = self.A; st = self.st; stop = OPT['stop']
        std = lambda ks, tt: (vL16, tt * 16384 + ks * 1024)
        for layer in (1, 2):
            ph = 4 * (layer - 1); L1 = layer == 1
            tok = self.attention(layer)
            self.stamp('attn')
            if L1:
                self.push([('W11', k) for k in range(43, 48)])
                A("v_xor_b32 v11, 32, v0")
                A.lg("ds_read_b128 v[64:67], v0"); t = A.lg("ds_read_b128 v[68:71], v11")
                for f in self.cs_io(0, 236, 'w'): self.emit(f)
                self.q.sort(key=lambda k: (k[0] != 'WO1', k[1]))
                self.bg(OPT['ack_bg'])
                A.wait(lg=t)
                for i in range(8): A("v_lshlrev_b32 v%d, 16, v%d\nv_and_b32 v%d, 0xffff0000, v%d" % (vAcc + 2 * i, 64 + i, vAcc + 2 * i + 1, 64 + i))
            else:
                A("v_lshl_add_u32 v13, s%d, 12, v%d" % (sW, vL16h))
                for u in range(4): A.lg("ds_read_b128 %s, v13 offset:%d" % (vr(vAcc + 4 * u, 4), L_PARK - 65536 + u * 1024))
            self.publish(tok, ph + 1)
            if L1: self.bg(OPT['poll_bg'])
            self.gemm2_setup()
            A("s_lshl_b32 s3, s{0}, 1\ns_add_u32 s3, s3, s{1}\ns_lshl_b32 s3, s3, 10\ns_lshl_b32 s{2}, s{3}, 15\ns_add_u32 s{2}, s{2}, s3\ns_add_u32 s{2}, s{2}, s{4}".format(sJ, sNH, sXst, sKH, sXB))
            if stop == ph + 1: break
            self.poll(ph + 1)
            def hook(i, h):
                if h == 0: self.push([('W11', 27 + i) if L1 else ('W12', 32 + i)])
                if i >= 8 and h == 0: self.bg(1)
            rt = self.gemm2(16, 'WO%d' % layer, (lambda i: Yslot(27 + i)) if L1 else (lambda i: Xslot(3 * i)), True, hook)
            self.q.sort(key=lambda k: k[1])
            for hf in range(2):
                for u in (2 * hf, 2 * hf + 1):
                    A.wait(lg=rt[u])
                    for h in (0, 2): A("v_pk_add_f32 %s, %s, %s" % (P2(vRes + 4 * u + h), P2(vAcc + 4 * u + h), P2(64 + 4 * u + h)))
                for i in range(4 * hf, 4 * hf + 4): A("v_cvt_pk_bf16_f32 v%d, v%d, v%d" % (80 + i, vRes + 2 * i, vRes + 2 * i + 1))
                tok = self.store("buffer_store_dwordx4 %s, v%d, %s, s%d offen offset:%d" % (vr(80 + 4 * hf, 4), vXst, rWS, sXst, hf * 512), first=L1)
            self.stamp('wo_st')
            if L1: self.bg(OPT['ack_bg'])
            self.stats_make()
            self.xdma_setup(True)
            if L1:
                for f in self.ones(120): A(f)
            else:
                for f in self.cs_io(1, 108, 'r'): self.emit(f)
            self.publish(tok, ph + 2)
            if L1: self.bg(OPT['poll_bg'])
            if stop == ph + 2: break
            self.poll(ph + 2)
            xt = {}
            def xd(n): xt[n] = self.dma(rWS, vL16, sB, (n >> 3) * 32768 + (n & 7) * 2048, sHst, (n >> 3) * 32768 + (n & 7) * 2048)
            for n in range(3): xd(n)
            use = 2 * layer - 1
            F = []; tk = {}
            acc1 = lambda ct, tt: vAcc + 16 * ct + 4 * tt
            grp = {(0, 0): 0, (0, 2): 1, (0, 4): 3, (0, 8): 7, (1, 0): 15}
            def gate(p, ks):
                if (p, ks) in grp: A.wait(vm=xt[grp[(p, ks)]]); A("s_barrier")
            def epi(p, packed):
                E = []
                for ct in range(3):
                    r = (120 + 4 * (ct & 1)) if p == 0 else 88 + 4 * ct
                    for tt in (2 * p, 2 * p + 1):
                        a = acc1(ct, tt)
                        if packed: E += ["v_pk_fma_f32 %s, %s, %s, %s %s" % (P2(a + h), P2(108 + 4 * ct + h), P2(80 + 2 * tt), P2(a + h), LO) for h in (0, 2)]
                        else: E += ["v_fmac_f32 v%d, v%d, v%d" % (a + h, 108 + 4 * ct + h, 80 + 2 * tt) for h in range(4)]
                        E += ["v_cvt_pk_bf16_f32 v%d, v%d, v%d" % (r + 2 * (tt & 1) + h // 2, a + h, a + h + 1) for h in (0, 2)]
                    E += ["v_pk_max_i16 v%d, v%d, 0" % (r + k, r + k) for k in (0, 2, 1, 3)]
                    E.append("s_lshr_b32 s3, s%d, 3" % sW1[ct])
                    E += ["v_permlane16_swap_b32 v%d, v%d" % (r, r + 2), "v_permlane16_swap_b32 v%d, v%d" % (r + 1, r + 3)]
                    def stf(ct=ct, r=r):
                        A("s_lshr_b32 s3, s%d, 3\ns_add_u32 s3, s3, s%d" % (sW1[ct], sHB))
                        st['hst'] = self.store("buffer_store_dwordx4 %s, v%d, %s, s3 offen offset:%d" % (vr(r, 4), vL16, rWS, p * 1024), first=L1)
                    E.append(stf)
                return E
            def tbl():
                A.wait_all_lg(); A("s_barrier")
                for t in range(4): tk[t] = A.lg("ds_read_b64 %s, v%d offset:%d" % (P2(80 + 2 * t), vStA, t * 128))
            nx = [3]
            def hook(p, ks, i):
                if p == 0 and i in (1, 4) and nx[0] < 16 and (nx[0] < 8 or i == 1): xd(nx[0]); nx[0] += 1
                elif i == 4 or (i == 1 and L1): self.bg(1)
                if p == 0 and ks == 3 and i == 2: self.stats_store(use)
                if L1 and p == 1 and i == 5: self.push([('W2', k) for k in range(3 * ks, min(3 * ks + 3, 43))])
                if p == 0 and ks == 11 and i == 2: st['s'] = self.run_lines(self.stats_lines(sSBc, use, 80))
                if p == 1 and ks == 2 and i == 2:
                    A.wait(vm=st['s'])
                    self.retry(self.sentinel(list(range(80, 88))), self.stats_lines(sSBc, use, 80))
                    F.extend(self.stats_finish(80) + [tbl, "s_nop 0", "s_nop 0", "s_nop 0", lambda: A.wait(lg=tk[3])] + epi(0, False))
            wk = 'W11' if L1 else 'W12'
            self.gemm1([[0, 1], [2, 3]], lambda ks, ct: self.need((wk, 3 * ks + ct)), Yslot if L1 else self.w12, acc1, lambda ct: False, (108, 120) if L1 else None, std, gate, hook, F)
            self.stamp('w1gemm')
            while F: self.emit(F.pop(0))
            for f in epi(1, True): self.emit(f)
            self.stamp('w1epi')
            if L1:
                self.bg(OPT['ack_bg'])
                for f in self.cs_io(1, 108, 'w'): self.emit(f)
            A("v_lshl_add_u32 v11, s%d, 7, v%d\nv_add_u32 v11, %d, v11" % (sKH, vFlag, L_SR))
            A.lg("ds_read_b32 v14, v11")
            self.publish(st['hst'], ph + 3)
            if L1: self.bg(OPT['poll_bg'])
            self.gemm2_setup()
            if not L1: A("v_lshlrev_b32 v0, 8, v%d\nv_lshrrev_b32 v15, 9, v%d\nv_lshl_add_u32 v0, v15, 4, v0" % (vFlag, vL16))
            if stop == ph + 3: break
            self.poll(ph + 3)
            def hook(i, h):
                if h == 0: self.bg(1)
            rt = self.gemm2(43, 'W2' if L1 else None, Yslot, False, hook)
            for hf in range(2):
                for u in (2 * hf, 2 * hf + 1):
                    A.wait(lg=rt[u])
                    for h in (0, 2): A("v_pk_add_f32 %s, %s, %s" % (P2(vAcc + 4 * u + h), P2(vAcc + 4 * u + h), P2(64 + 4 * u + h)))
                    for h in (0, 2): A("v_pk_fma_f32 %s, %s, v[14:15], %s %s" % (P2(vRes + 4 * u + h), P2(vAcc + 4 * u + h), P2(vRes + 4 * u + h), LO))
                for i in range(4 * hf, 4 * hf + 4): A("v_cvt_pk_bf16_f32 v%d, v%d, v%d" % (80 + i, vRes + 2 * i, vRes + 2 * i + 1))
                if L1: tok = self.store("buffer_store_dwordx4 %s, v%d, %s, s%d offen offset:%d" % (vr(80 + 4 * hf, 4), vXst, rWS, sXst, hf * 512))
                else: A.vm("buffer_store_dwordx4 %s, v0, %s, s%d offen offset:%d" % (vr(80 + 4 * hf, 4), rOUT, sNAT, hf * 32))
            self.stamp('w2_st')
            if not L1: break
            self.stats_make()
            self.xdma_setup(False)
            self.publish(tok, ph + 4)
            self.park()
            for f in self.cs_io(0, 236, 'r') + self.ones(248) + self.masks(): self.emit(f)
            if stop == ph + 4: break
            self.poll(ph + 4)
            xt = {}
            def xd(ks): xt[ks] = self.dma(rWS, vL16, sB, ks * 1024, sHst, ks * 1024)
            for n in range(3): xd(n)
            F = []
            hl = self.stats_lines(sSBc, 2, 108) + self.stats_lines(sSBh, 2, 116) + \
                 ["buffer_load_dwordx4 %s, v%d, %s, s%d offen offset:%d sc1" % (vr(16 + 4 * u, 4), vL16, rWS, sHXc, u * 1024) for u in range(4)]
            grp = {0: 0, 1: 1, 2: 3, 4: 7, 8: 15}
            def gate(p, ks):
                if ks in grp: A.wait(vm=xt[grp[ks]]); A("s_barrier")
            nx = [3]; H = []
            def tbl():
                A.wait_all_lg(); A("s_barrier")
            def hook(p, ks, i):
                if i in (1, 5, 10) and nx[0] < 16: xd(nx[0]); nx[0] += 1
                elif H and i in (1, 4, 7, 10):
                    l = H.pop(0)
                    if not l.startswith('buffer_'): A(l); l = H.pop(0)
                    st['hx'] = A.vm(l)
                elif i in (4, 10) and ks >= 5: self.bg(1)
                if ks == 2 and i == 7:
                    self.stats_store(2)
                    A("s_mov_b32 exec_lo, 0xffff0000\ns_mov_b32 exec_hi, 0xffff0000")
                    for h in range(2): A.vm("buffer_store_dwordx4 %s, v%d, %s, s%d offen offset:%d sc1" % (vr(80 + 4 * h, 4), vXst, rWS, sHXp, h * 512))
                    A("s_mov_b64 exec, -1")
                if i == 11: self.push([('WO2', ks)])
                if ks == 6 and i == 11: H.extend(hl)
                if ks == 11 and i == 11:
                    A.wait(vm=st['hx'])
                    chk = self.sentinel(list(range(108, 124)) + list(range(16, 32)))
                    F.extend(chk[:-1]); F.append(lambda: self.retry2(chk, hl))
                    F.append("v_lshl_add_u32 v13, s%d, 12, v%d" % (sW, vL16h))
                    W = [('lg', "ds_write_b128 v13, %s offset:%d" % (vr(16 + 4 * u, 4), u * 1024)) for u in range(4)]
                    Z = self.zipf(self.stats_finish(108), self.stats_finish(116, tile=4))
                    for u in range(4): Z.insert(1 + 8 * u, W[u])
                    F.extend(Z + [tbl] + self.att_pre())
            self.gemm1([[0, 1, 2, 3]], None, Xslot, self.accq, lambda ct: ct == 2, None, std, gate, hook, F)
            while F: self.emit(F.pop(0))
            self.stamp('qkv2')
        l = self.label('noE')
        A("s_or_b32 s3, s2, s%d\ns_cmp_lg_u32 s3, 0\ns_cbranch_scc1 %s" % (sW, l))
        A("v_mov_b32 v12, s%d\nv_mov_b32 v13, s%d\nv_mov_b32 v11, 0\ns_mov_b64 exec, 1" % (sTAG, sTAG + 1))
        A("buffer_store_dwordx2 v[12:13], v11, %s, 0 offen sc1\ns_mov_b64 exec, -1" % rWS)
        A("%s:" % l)
        if OPT['prof']:
            A("s_waitcnt vmcnt(0)\ns_memtime s[100:101]\ns_waitcnt lgkmcnt(0)")
            A("s_lshl_b32 s3, s2, 2\ns_add_u32 s3, s3, s%d\ns_lshl_b32 s3, s3, 7\ns_add_u32 s3, s3, %d\nv_mov_b32 v11, 0" % (sW, WS_PROF))
            for i in range(19):
                A("v_mov_b32 v12, s%d" % (sST0 + 2 * i))
                A("buffer_store_dword v12, v11, %s, s3 offen offset:%d" % (rWS, 4 * i))
            A("v_mov_b32 v12, s%d\nbuffer_store_dword v12, v11, %s, s3 offen offset:124" % (sFAST, rWS))
        if OPT['ea'] >= 0:
            l = self.label('echo')
            A("s_waitcnt vmcnt(0)\ns_memrealtime s[68:69]\ns_waitcnt lgkmcnt(0)\ns_sub_u32 s3, s66, s64\ns_min_u32 s3, s3, 20000")
            A("%s:\ns_memrealtime s[70:71]\ns_waitcnt lgkmcnt(0)\ns_sub_u32 s70, s70, s68\ns_cmp_lt_u32 s70, s3\ns_cbranch_scc1 %s" % (l, l))
        A("s_endpgm")
    def retry2(self, chk, reload_lines):
        A = self.A
        l1, l2 = self.label('retry'), self.label('got')
        A(chk[-1]); A("s_cbranch_vccnz %s\n%s:" % (l1, l2))
        self.cold.append("%s:\ns_sleep 1" % l1)
        self.cold += reload_lines
        self.cold.append("s_sub_u32 s%d, s%d, 1\ns_cbranch_scc1 L_end\ns_waitcnt vmcnt(0)" % (sSPIN, sSPIN))
        self.cold += chk
        self.cold.append("s_cbranch_vccnz %s\ns_branch %s" % (l1, l2))
    def build(self):
        self.prologue(); self.qkv1()
        self.A("s_cmp_eq_u32 s%d, 0\ns_cbranch_scc1 L_slow" % sFAST)
        self.A("L_fork:")
        if self.slow: self.cold = []
        self.rest()
        for c in self.cold: self.A(c)
        lines, added = pad_hazards(self.A.L)
        i = lines.index("L_fork:")
        self.added = added
        return lines[:i], lines[i + 1:]

KDESC = """.section .rodata,"a"
.p2align 6
.amdhsa_kernel %s
  .amdhsa_next_free_vgpr 512
  .amdhsa_next_free_sgpr 102
  .amdhsa_accum_offset 256
  .amdhsa_group_segment_fixed_size 0
  .amdhsa_kernarg_size 72
  .amdhsa_user_sgpr_count 2
  .amdhsa_user_sgpr_kernarg_segment_ptr 1
  .amdhsa_system_sgpr_workgroup_id_x 1
  .amdhsa_float_denorm_mode_32 3
.end_amdhsa_kernel"""

def header():
    src = open(os.path.join(os.path.dirname(os.path.abspath(__file__)), "..", "cdna_kernels", NAME + ".s.ref")).read()
    return [l for l in src.split('\n') if l.startswith(';') and '@launch' not in l]

if __name__ == "__main__":
    out = header()
    Mf = Main(False); head, fast = Mf.build()
    Ms = Main(True); _, slow = Ms.build()
    if OPT['prof']: out.insert(0, "; stamps: " + " ".join(Mf.names))
    out.append("; @launch grid=(256,1,1) block=(256,1,1) lds=%d" % LDS_BYTES)
    out.append('.amdgcn_target "amdgcn-amd-amdhsa--gfx950"\n.text')
    k = NAME + "_kernel"
    out.append(".globl %s\n.p2align 8\n.type %s,@function\n%s:" % (k, k, k))
    lines = head + fast + ["L_end:", "s_endpgm", "L_slow:"] + slow
    sys.stderr.write("%d lines (fast path %d), %d pad states\n" % (len(lines), len(head) + len(fast), Mf.added))
    out += ["    " + l if not l.endswith(':') else l for l in lines]
    out.append(KDESC % k)
    open(sys.argv[1], "w").write("\n".join(out) + "\n")
```
